```python
import torch

def _softmax(x, axis=-1):
    return torch.softmax(x, dim=axis)
def _gelu(x):
    return torch.nn.functional.gelu(x, approximate="tanh")
def _silu(x):
    return torch.nn.functional.silu(x)
def _sigmoid(x):
    return torch.sigmoid(x)
def _layernorm(x, axis=-1, eps=1e-5):
    m = x.mean(dim=axis, keepdim=True)
    v = x.var(dim=axis, keepdim=True, unbiased=False)
    return (x - m) / torch.sqrt(v + eps)
def _scatter_add(tgt, idx, src, axis=0):
    return tgt.clone().index_add_(axis, idx, src)
def _segment_sum(src, seg, n):
    out = torch.zeros((n,) + src.shape[1:], dtype=src.dtype)
    return out.index_add_(0, seg, src)
def _pad(x, pw):
    flat = tuple(v for pair in reversed(pw) for v in pair)
    return torch.nn.functional.pad(x, flat)

kernel_name = 'standalone__softmax_full_bidir__decode'

def setup_inputs():

    _w = (lambda a: (lambda t: t.to(torch.bfloat16) if t.is_floating_point() else t)(torch.as_tensor(a)))
    B, H, Sq, Skv, Dh = 4, 32, 1, 4096, 128
    return {
        "q": _w((lambda *s: torch.randn(*s, dtype=torch.bfloat16) * 0.8)(B, H, Sq, Dh)),
        "k": _w((lambda *s: torch.randn(*s, dtype=torch.bfloat16) * 0.8)(B, H, Skv, Dh)),
        "v": _w((lambda *s: torch.randn(*s, dtype=torch.bfloat16) * 0.05)(B, H, Skv, Dh)),
    }

def reference(q, k, v):
    scale = q.shape[-1] ** -0.5
    scores = torch.einsum('bhqd,bhkd->bhqk', q, k) * scale
    attn = _softmax(scores, axis=-1)
    return torch.einsum('bhqk,bhkd->bhqd', attn, v)
```

```python
import sys, math, struct

def f2u(x):
    return struct.unpack('<I', struct.pack('<f', x))[0]

HEADER = open('standalone__softmax_full_bidir__decode.s.ref').read().split('; Override launch')[0]

def gen(NW=16, NSPLIT=2, D=16, inter=False, nt=True, pairx=True):
    NH = 128
    keys_wg = 4096 // NSPLIT
    U = keys_wg // NW // 4
    NWG = NH * NSPLIT
    wg_bytes = keys_wg * 256
    C = (128 ** -0.5) * math.log2(math.e)
    L = []
    A = L.append
    ntf = ' nt' if nt else ''
    vOFF = 1
    vQ = 4
    vS = 8
    vACC = vS + U
    vT = vACC + 8
    vX = vT + 8
    vR = (vX + 8 + 3) // 4 * 4
    nv = vR + 4 * D
    lds_ml = NW * 512
    lds = lds_ml + NW * 8
    lds = (lds + 255) // 256 * 256
    A(HEADER.rstrip('\n'))
    A('; Override launch geometry by editing the next line (default: block=256,')
    A(f'; @launch grid=({NWG},1,1) block=({NW*64},1,1) lds={lds}')
    A('.amdgcn_target "amdgcn-amd-amdhsa--gfx950"')
    A('.text')
    A('.globl standalone__softmax_full_bidir__decode_kernel')
    A('.p2align 8')
    A('.type standalone__softmax_full_bidir__decode_kernel,@function')
    A('standalone__softmax_full_bidir__decode_kernel:')
    A(f'    s_cmp_ge_u32 s2, {NWG}')
    A('    s_cbranch_scc1 L_done')
    A('    s_load_dwordx4 s[4:7], s[0:1], 0       ; q, k')
    A('    s_load_dwordx4 s[8:11], s[0:1], 16     ; v, out')
    A('    s_load_dwordx4 s[12:15], s[0:1], 32')
    if pairx:
        A('    s_and_b32 s16, s2, 7')
        A('    s_lshr_b32 s17, s2, 3')
        A(f'    s_and_b32 s18, s17, {NSPLIT-1}       ; split')
        A(f'    s_lshr_b32 s17, s17, {int(math.log2(NSPLIT))}')
        A('    s_lshl_b32 s17, s17, 3')
        A('    s_add_u32 s17, s17, s16             ; head')
    else:
        A(f'    s_and_b32 s18, s2, {NSPLIT-1}')
        A(f'    s_lshr_b32 s17, s2, {int(math.log2(NSPLIT))}')
    A('    v_lshrrev_b32 v2, 6, v0')
    A('    v_and_b32 v3, 63, v0                ; lane')
    A('    v_readfirstlane_b32 s19, v2')
    A('    v_and_b32 v2, 15, v0')
    A('    v_lshlrev_b32 v2, 4, v2             ; (lane%16)*16')
    A('    s_lshl_b32 s20, s17, 20')
    A(f'    s_mul_i32 s21, s18, {wg_bytes}')
    A('    s_add_u32 s20, s20, s21')
    if inter:
        A('    s_lshl_b32 s21, s19, 10')
    else:
        A(f'    s_mul_i32 s21, s19, {U*1024}')
    A('    s_add_u32 s20, s20, s21')
    A(f'    v_lshlrev_b32 v{vOFF}, 4, v3')
    A(f'    v_add_u32 v{vOFF}, s20, v{vOFF}')
    A('    s_lshl_b32 s22, s17, 8')
    A('    s_waitcnt lgkmcnt(0)')
    A('    s_mov_b32 s24, s6')
    A('    s_mov_b32 s25, s7')
    A('    s_mov_b32 s26, 0x8000000')
    A('    s_mov_b32 s27, 0x00020000           ; K srd s[24:27]')
    A('    s_mov_b32 s28, s8')
    A('    s_mov_b32 s29, s9')
    A('    s_mov_b32 s30, 0x8000000')
    A('    s_mov_b32 s31, 0x00020000           ; V srd s[28:31]')
    A('    s_mov_b32 s32, s4')
    A('    s_mov_b32 s33, s5')
    A('    s_mov_b32 s34, 0x8000')
    A('    s_mov_b32 s35, 0x00020000           ; Q srd s[32:35]')
    A(f'    buffer_load_dwordx4 v[{vQ}:{vQ+3}], v2, s[32:35], s22 offen')
    ustep = NW * 1024 if inter else 1024
    NL = 2 * U
    def issue(i):
        srd = 's[24:27]' if i < U else 's[28:31]'
        u = i % U
        off = u * ustep
        r = vR + 4 * (i % D)
        imm = off % 4096
        so = off - imm
        sreg = 40 + (i % 8)
        if so == 0:
            A(f'    buffer_load_dwordx4 v[{r}:{r+3}], v{vOFF}, {srd}, 0 offen offset:{imm}{ntf}')
        else:
            A(f'    s_mov_b32 s{sreg}, {so}')
            A(f'    buffer_load_dwordx4 v[{r}:{r+3}], v{vOFF}, {srd}, s{sreg} offen offset:{imm}{ntf}')
    for i in range(min(D, NL)):
        issue(i)
    A('    s_mov_b32 s48, s10')
    A('    s_mov_b32 s49, s11')
    A('    s_mov_b32 s50, 0x8000')
    A('    s_mov_b32 s51, 0x00020000')
    A('    s_mov_b32 s52, s12')
    A('    s_mov_b32 s53, s13')
    A('    s_mov_b32 s54, 256')
    A('    s_mov_b32 s55, 0x00020000')
    A('    s_mov_b32 s56, s14')
    A('    s_mov_b32 s57, s15')
    A(f'    s_mov_b32 s58, {NWG*1024}')
    A('    s_mov_b32 s59, 0x00020000')
    A(f'    s_mov_b32 s60, 0x{f2u(C):08x}       ; scale*log2e')
    A('    s_mov_b32 s61, 0xffff0000')
    for j in range(8):
        A(f'    v_mov_b32 v{vACC+j}, 0')
    def dpp_rounds(g):
        for rot in (8, 4, 2, 1):
            for u in range(4*g, 4*g+4):
                A(f'    v_add_f32_dpp v{vS+u}, v{vS+u}, v{vS+u} row_ror:{rot} row_mask:0xf bank_mask:0xf')
    for i in range(U):
        A(f'    s_waitcnt vmcnt({min(D-1, NL-1-i)})')
        r = vR + 4 * (i % D)
        A(f'    v_dot2_f32_bf16 v{vS+i}, v{r}, v{vQ}, 0')
        for j in range(1, 4):
            A(f'    v_dot2_f32_bf16 v{vS+i}, v{r+j}, v{vQ+j}, v{vS+i}')
        if i + D < NL:
            issue(i + D)
        if i % 4 == 0 and i >= 4:
            dpp_rounds(i // 4 - 1)
    A('    s_nop 3')
    dpp_rounds(U // 4 - 1)
    m = vX
    A(f'    v_max3_f32 v{m}, v{vS}, v{vS+1}, v{vS+2}')
    k = 3
    while k + 1 < U:
        A(f'    v_max3_f32 v{m}, v{m}, v{vS+k}, v{vS+k+1}')
        k += 2
    if k < U:
        A(f'    v_max_f32 v{m}, v{m}, v{vS+k}')
    A(f'    v_mov_b32 v{m+1}, v{m}')
    A('    s_nop 1')
    A(f'    v_permlane32_swap_b32 v{m}, v{m+1}')
    A('    s_nop 1')
    A(f'    v_max_f32 v{m}, v{m}, v{m+1}')
    A(f'    v_mov_b32 v{m+1}, v{m}')
    A('    s_nop 1')
    A(f'    v_permlane16_swap_b32 v{m}, v{m+1}')
    A('    s_nop 1')
    A(f'    v_max_f32 v{m}, v{m}, v{m+1}')
    A(f'    v_mul_f32 v{m+1}, s60, v{m}')
    for u in range(U):
        A(f'    v_fma_f32 v{vS+u}, v{vS+u}, s60, -v{m+1}')
    for u in range(U):
        A(f'    v_exp_f32 v{vS+u}, v{vS+u}')
    lsum = m + 2
    A('    s_nop 0')
    A(f'    v_add_f32 v{lsum}, v{vS}, v{vS+1}')
    A(f'    v_add_f32 v{lsum+1}, v{vS+2}, v{vS+3}')
    for u in range(4, U, 2):
        A(f'    v_add_f32 v{lsum}, v{lsum}, v{vS+u}')
        A(f'    v_add_f32 v{lsum+1}, v{lsum+1}, v{vS+u+1}')
    A(f'    v_add_f32 v{lsum}, v{lsum}, v{lsum+1}')
    for i in range(U, NL):
        u = i - U
        A(f'    s_waitcnt vmcnt({min(D-1, NL-1-i)})')
        r = vR + 4 * (i % D)
        for j in range(4):
            A(f'    v_lshlrev_b32 v{vT+2*j}, 16, v{r+j}')
            A(f'    v_and_b32 v{vT+2*j+1}, s61, v{r+j}')
        if i + D < NL:
            issue(i + D)
        for j in range(8):
            A(f'    v_fmac_f32 v{vACC+j}, v{vS+u}, v{vT+j}')
    A(f'    v_mov_b32 v{lsum+1}, v{lsum}')
    A('    s_nop 1')
    for j in range(4):
        A(f'    v_permlane32_swap_b32 v{vACC+j}, v{vACC+4+j}')
    A(f'    v_permlane32_swap_b32 v{lsum}, v{lsum+1}')
    A('    s_nop 1')
    for j in range(4):
        A(f'    v_add_f32 v{vACC+j}, v{vACC+j}, v{vACC+4+j}')
    A(f'    v_add_f32 v{lsum}, v{lsum}, v{lsum+1}')
    A(f'    v_mov_b32 v{lsum+1}, v{lsum}')
    A('    s_nop 1')
    A(f'    v_permlane16_swap_b32 v{vACC}, v{vACC+2}')
    A(f'    v_permlane16_swap_b32 v{vACC+1}, v{vACC+3}')
    A(f'    v_permlane16_swap_b32 v{lsum}, v{lsum+1}')
    A('    s_nop 1')
    A(f'    v_add_f32 v{vACC}, v{vACC}, v{vACC+2}')
    A(f'    v_add_f32 v{vACC+1}, v{vACC+1}, v{vACC+3}')
    A(f'    v_add_f32 v{m+1}, v{lsum}, v{lsum+1}   ; wave l  (v{m}=m, v{m+1}=l)')
    t = vT
    A(f'    v_and_b32 v{t}, 15, v3')
    A(f'    v_lshlrev_b32 v{t}, 5, v{t}          ; c*32 bytes')
    A(f'    v_lshrrev_b32 v{t+1}, 4, v3')
    A(f'    v_lshl_add_u32 v{t}, v{t+1}, 3, v{t} ; + r*8')
    A('    s_lshl_b32 s62, s19, 9')
    A(f'    v_add_u32 v{t}, s62, v{t}')
    A(f'    ds_write_b64 v{t}, v[{vACC}:{vACC+1}]')
    A('    s_lshl_b32 s62, s19, 3')
    A(f'    s_add_u32 s62, s62, {lds_ml}')
    A(f'    v_mov_b32 v{t+2}, s62')
    A(f'    ds_write_b64 v{t+2}, v[{m}:{m+1}]')
    A('    s_waitcnt lgkmcnt(0)')
    A('    s_barrier')
    A('    s_cmp_lg_u32 s19, 0')
    A('    s_cbranch_scc1 L_done')
    A(f'    v_and_b32 v{t}, {NW-1}, v3')
    A(f'    v_lshlrev_b32 v{t}, 3, v{t}')
    A(f'    ds_read_b64 v[{m}:{m+1}], v{t} offset:{lds_ml}')
    A(f'    v_lshlrev_b32 v{t+1}, 3, v3           ; lane*8')
    for w in range(NW):
        A(f'    ds_read_b64 v[{vR+2*w}:{vR+2*w+1}], v{t+1} offset:{w*512}')
    A(f'    s_waitcnt lgkmcnt({min(NW,15)})')
    M = m + 2
    A(f'    v_mov_b32 v{M}, v{m}')
    A('    s_nop 1')
    rots = [r for r in (8, 4, 2, 1) if r < NW]
    for rot in rots:
        A(f'    v_max_f32_dpp v{M}, v{M}, v{M} row_ror:{rot} row_mask:0xf bank_mask:0xf')
        A('    s_nop 1')
    F = m + 3
    A(f'    v_sub_f32 v{F}, v{m}, v{M}')
    A(f'    v_mul_f32 v{F}, s60, v{F}')
    A(f'    v_exp_f32 v{F}, v{F}')
    A('    s_nop 0')
    Lr = m + 4
    A(f'    v_mul_f32 v{Lr}, v{m+1}, v{F}')
    A('    s_nop 1')
    for rot in rots:
        A(f'    v_add_f32_dpp v{Lr}, v{Lr}, v{Lr} row_ror:{rot} row_mask:0xf bank_mask:0xf')
        A('    s_nop 1')
    for w in range(NW):
        A(f'    v_readlane_b32 s{64+w}, v{F}, {w}')
    A('    s_waitcnt lgkmcnt(0)')
    o = vACC
    assert vACC % 4 == 0
    A(f'    v_mul_f32 v{o}, s64, v{vR}')
    A(f'    v_mul_f32 v{o+1}, s64, v{vR+1}')
    for w in range(1, NW):
        A(f'    v_fmac_f32 v{o}, s{64+w}, v{vR+2*w}')
        A(f'    v_fmac_f32 v{o+1}, s{64+w}, v{vR+2*w+1}')
    A(f'    v_mov_b32 v{o+2}, v{M}')
    A(f'    v_mov_b32 v{o+3}, v{Lr}')
    A(f'    s_mul_i32 s62, s17, {NSPLIT}')
    A('    s_add_u32 s63, s62, s18')
    A('    s_lshl_b32 s63, s63, 10')
    A('    s_lshl_b32 s62, s62, 10')
    A(f'    v_lshlrev_b32 v{t}, 4, v3             ; lane*16')
    A(f'    buffer_store_dwordx4 v[{o}:{o+3}], v{t}, s[56:59], s63 offen sc0 sc1')
    A('    s_waitcnt vmcnt(0)')
    A('    s_lshr_b32 s80, s17, 1')
    A('    s_lshl_b32 s80, s80, 2')
    A('    s_and_b32 s81, s17, 1')
    A('    s_lshl_b32 s81, s81, 4              ; shift')
    A('    s_lshl_b32 s82, 1, s81')
    A(f'    v_mov_b32 v{t+2}, s82')
    A(f'    v_mov_b32 v{t+3}, s80')
    A('    s_mov_b64 s[84:85], exec')
    A('    s_mov_b64 exec, 1')
    A(f'    buffer_atomic_add v{t+2}, v{t+3}, s[52:55], 0 offen sc0 sc1')
    A('    s_mov_b64 exec, s[84:85]')
    A('    s_waitcnt vmcnt(0)')
    A(f'    v_readfirstlane_b32 s83, v{t+2}')
    A('    s_nop 3')
    A('    s_lshr_b32 s83, s83, s81')
    A('    s_and_b32 s83, s83, 0xffff')
    A(f'    s_cmp_lg_u32 s83, {NSPLIT-1}')
    A('    s_cbranch_scc1 L_done')
    for sidx in range(NSPLIT):
        A(f'    buffer_load_dwordx4 v[{vR+4*sidx}:{vR+4*sidx+3}], v{t}, s[56:59], s62 offen offset:{sidx*1024} sc0 sc1')
    A('    s_waitcnt vmcnt(0)')
    A(f'    v_max_f32 v{M}, v{vR+2}, v{vR+6}')
    for sidx in range(2, NSPLIT):
        A(f'    v_max_f32 v{M}, v{M}, v{vR+4*sidx+2}')
    for sidx in range(NSPLIT):
        A(f'    v_sub_f32 v{vR+4*sidx+2}, v{vR+4*sidx+2}, v{M}')
        A(f'    v_mul_f32 v{vR+4*sidx+2}, s60, v{vR+4*sidx+2}')
        A(f'    v_exp_f32 v{vR+4*sidx+2}, v{vR+4*sidx+2}')
    A('    s_nop 0')
    A(f'    v_mul_f32 v{o}, v{vR}, v{vR+2}')
    A(f'    v_mul_f32 v{o+1}, v{vR+1}, v{vR+2}')
    A(f'    v_mul_f32 v{o+2}, v{vR+3}, v{vR+2}')
    for sidx in range(1, NSPLIT):
        b = vR + 4 * sidx
        A(f'    v_fmac_f32 v{o}, v{b}, v{b+2}')
        A(f'    v_fmac_f32 v{o+1}, v{b+1}, v{b+2}')
        A(f'    v_fmac_f32 v{o+2}, v{b+3}, v{b+2}')
    A(f'    v_rcp_f32 v{o+2}, v{o+2}')
    A('    s_nop 0')
    A(f'    v_mul_f32 v{o}, v{o}, v{o+2}')
    A(f'    v_mul_f32 v{o+1}, v{o+1}, v{o+2}')
    A(f'    v_cvt_pk_bf16_f32 v{o}, v{o}, v{o+1}')
    A(f'    v_lshlrev_b32 v{t+1}, 2, v3')
    A(f'    buffer_store_dword v{o}, v{t+1}, s[48:51], s22 offen')
    A('L_done:')
    A('    s_endpgm')
    A('.section .rodata,"a"')
    A('.p2align 6')
    A('.amdhsa_kernel standalone__softmax_full_bidir__decode_kernel')
    nva = (nv + 7) // 8 * 8
    A(f'  .amdhsa_next_free_vgpr {nva}')
    A('  .amdhsa_next_free_sgpr 96')
    A(f'  .amdhsa_accum_offset {nva}')
    A('  .amdhsa_group_segment_fixed_size 0')
    A('  .amdhsa_kernarg_size 48')
    A('  .amdhsa_user_sgpr_count 2')
    A('  .amdhsa_user_sgpr_kernarg_segment_ptr 1')
    A('  .amdhsa_system_sgpr_workgroup_id_x 1')
    A('.end_amdhsa_kernel')
    return '\n'.join(L) + '\n'

if __name__ == '__main__':
    import argparse
    ap = argparse.ArgumentParser()
    ap.add_argument('-o', default='standalone__softmax_full_bidir__decode.s')
    ap.add_argument('--nw', type=int, default=16)
    ap.add_argument('--nsplit', type=int, default=2)
    ap.add_argument('--d', type=int, default=16)
    ap.add_argument('--inter', type=int, default=0)
    ap.add_argument('--nt', type=int, default=1)
    a = ap.parse_args()
    open(a.o, 'w').write(gen(a.nw, a.nsplit, a.d, bool(a.inter), bool(a.nt)))
```

```python
import sys, math, struct

def f2u(x):
    return struct.unpack('<I', struct.pack('<f', x))[0]

HEADER = open('standalone__softmax_full_bidir__decode.s.ref').read().split('; Override launch')[0]

def gen(NW=16, NSPLIT=2, D=16, inter=False, nt=True, pairx=True, diag=False):
    NH = 128
    keys_wg = 4096 // NSPLIT
    U = keys_wg // NW // 4
    NWG = NH * NSPLIT
    wg_bytes = keys_wg * 256
    C = (128 ** -0.5) * math.log2(math.e)
    L = []
    A = L.append
    ntf = ' nt' if nt else ''
    vOFF = 1
    vQ = 4
    vS = 8
    vACC = vS + U
    vT = vACC + 8
    vX = vT + 8
    vR = (vX + 8 + 3) // 4 * 4
    nv = vR + 4 * D
    lds_ml = NW * 512
    lds = lds_ml + NW * 8
    lds = (lds + 255) // 256 * 256
    A(HEADER.rstrip('\n'))
    A('; Override launch geometry by editing the next line (default: block=256,')
    A(f'; @launch grid=({NWG},1,1) block=({NW*64},1,1) lds={lds}')
    A('.amdgcn_target "amdgcn-amd-amdhsa--gfx950"')
    A('.text')
    A('.globl standalone__softmax_full_bidir__decode_kernel')
    A('.p2align 8')
    A('.type standalone__softmax_full_bidir__decode_kernel,@function')
    A('standalone__softmax_full_bidir__decode_kernel:')
    A(f'    s_cmp_ge_u32 s2, {NWG}')
    A('    s_cbranch_scc1 L_done')
    A('    s_load_dwordx4 s[4:7], s[0:1], 0       ; q, k')
    A('    s_load_dwordx4 s[8:11], s[0:1], 16     ; v, out')
    A('    s_load_dwordx4 s[12:15], s[0:1], 32')
    if diag:
        A('    s_memrealtime s[90:91]')
    if pairx:
        A('    s_and_b32 s16, s2, 7')
        A('    s_lshr_b32 s17, s2, 3')
        A(f'    s_and_b32 s18, s17, {NSPLIT-1}       ; split')
        A(f'    s_lshr_b32 s17, s17, {int(math.log2(NSPLIT))}')
        A('    s_lshl_b32 s17, s17, 3')
        A('    s_add_u32 s17, s17, s16             ; head')
    else:
        A(f'    s_and_b32 s18, s2, {NSPLIT-1}')
        A(f'    s_lshr_b32 s17, s2, {int(math.log2(NSPLIT))}')
    A('    v_lshrrev_b32 v2, 6, v0')
    A('    v_and_b32 v3, 63, v0                ; lane')
    A('    v_readfirstlane_b32 s19, v2')
    A('    v_and_b32 v2, 15, v0')
    A('    v_lshlrev_b32 v2, 4, v2             ; (lane%16)*16')
    A('    s_lshl_b32 s20, s17, 20')
    A(f'    s_mul_i32 s21, s18, {wg_bytes}')
    A('    s_add_u32 s20, s20, s21')
    if inter:
        A('    s_lshl_b32 s21, s19, 10')
    else:
        A(f'    s_mul_i32 s21, s19, {U*1024}')
    A('    s_add_u32 s20, s20, s21')
    A(f'    v_lshlrev_b32 v{vOFF}, 4, v3')
    A(f'    v_add_u32 v{vOFF}, s20, v{vOFF}')
    A('    s_lshl_b32 s22, s17, 8')
    A('    s_waitcnt lgkmcnt(0)')
    A('    s_mov_b32 s24, s6')
    A('    s_mov_b32 s25, s7')
    A('    s_mov_b32 s26, 0x8000000')
    A('    s_mov_b32 s27, 0x00020000           ; K srd s[24:27]')
    A('    s_mov_b32 s28, s8')
    A('    s_mov_b32 s29, s9')
    A('    s_mov_b32 s30, 0x8000000')
    A('    s_mov_b32 s31, 0x00020000           ; V srd s[28:31]')
    A('    s_mov_b32 s32, s4')
    A('    s_mov_b32 s33, s5')
    A('    s_mov_b32 s34, 0x8000')
    A('    s_mov_b32 s35, 0x00020000           ; Q srd s[32:35]')
    A(f'    buffer_load_dwordx4 v[{vQ}:{vQ+3}], v2, s[32:35], s22 offen')
    ustep = NW * 1024 if inter else 1024
    NL = 2 * U
    def issue(i):
        srd = 's[24:27]' if i < U else 's[28:31]'
        u = i % U
        off = u * ustep
        r = vR + 4 * (i % D)
        imm = off % 4096
        so = off - imm
        sreg = 40 + (i % 8)
        if so == 0:
            A(f'    buffer_load_dwordx4 v[{r}:{r+3}], v{vOFF}, {srd}, 0 offen offset:{imm}{ntf}')
        else:
            A(f'    s_mov_b32 s{sreg}, {so}')
            A(f'    buffer_load_dwordx4 v[{r}:{r+3}], v{vOFF}, {srd}, s{sreg} offen offset:{imm}{ntf}')
    for i in range(min(D, NL)):
        issue(i)
    A('    s_mov_b32 s48, s10')
    A('    s_mov_b32 s49, s11')
    A('    s_mov_b32 s50, 0x8000')
    A('    s_mov_b32 s51, 0x00020000')
    A('    s_mov_b32 s52, s12')
    A('    s_mov_b32 s53, s13')
    A('    s_mov_b32 s54, 256')
    A('    s_mov_b32 s55, 0x00020000')
    A('    s_mov_b32 s56, s14')
    A('    s_mov_b32 s57, s15')
    A(f'    s_mov_b32 s58, {NWG*1024}')
    A('    s_mov_b32 s59, 0x00020000')
    A(f'    s_mov_b32 s60, 0x{f2u(C):08x}       ; scale*log2e')
    A('    s_mov_b32 s61, 0xffff0000')
    for j in range(8):
        A(f'    v_mov_b32 v{vACC+j}, 0')
    def dpp_rounds(g):
        for rot in (8, 4, 2, 1):
            for u in range(4*g, 4*g+4):
                A(f'    v_add_f32_dpp v{vS+u}, v{vS+u}, v{vS+u} row_ror:{rot} row_mask:0xf bank_mask:0xf')
    for i in range(U):
        A(f'    s_waitcnt vmcnt({min(D-1, NL-1-i)})')
        r = vR + 4 * (i % D)
        A(f'    v_dot2_f32_bf16 v{vS+i}, v{r}, v{vQ}, 0')
        for j in range(1, 4):
            A(f'    v_dot2_f32_bf16 v{vS+i}, v{r+j}, v{vQ+j}, v{vS+i}')
        if i + D < NL:
            issue(i + D)
        if i % 4 == 0 and i >= 4:
            dpp_rounds(i // 4 - 1)
    A('    s_nop 3')
    dpp_rounds(U // 4 - 1)
    m = vX
    A(f'    v_max3_f32 v{m}, v{vS}, v{vS+1}, v{vS+2}')
    k = 3
    while k + 1 < U:
        A(f'    v_max3_f32 v{m}, v{m}, v{vS+k}, v{vS+k+1}')
        k += 2
    if k < U:
        A(f'    v_max_f32 v{m}, v{m}, v{vS+k}')
    A(f'    v_mov_b32 v{m+1}, v{m}')
    A('    s_nop 1')
    A(f'    v_permlane32_swap_b32 v{m}, v{m+1}')
    A('    s_nop 1')
    A(f'    v_max_f32 v{m}, v{m}, v{m+1}')
    A(f'    v_mov_b32 v{m+1}, v{m}')
    A('    s_nop 1')
    A(f'    v_permlane16_swap_b32 v{m}, v{m+1}')
    A('    s_nop 1')
    A(f'    v_max_f32 v{m}, v{m}, v{m+1}')
    A(f'    v_mul_f32 v{m+1}, s60, v{m}')
    for u in range(U):
        A(f'    v_fma_f32 v{vS+u}, v{vS+u}, s60, -v{m+1}')
    for u in range(U):
        A(f'    v_exp_f32 v{vS+u}, v{vS+u}')
    lsum = m + 2
    A('    s_nop 0')
    A(f'    v_add_f32 v{lsum}, v{vS}, v{vS+1}')
    A(f'    v_add_f32 v{lsum+1}, v{vS+2}, v{vS+3}')
    for u in range(4, U, 2):
        A(f'    v_add_f32 v{lsum}, v{lsum}, v{vS+u}')
        A(f'    v_add_f32 v{lsum+1}, v{lsum+1}, v{vS+u+1}')
    A(f'    v_add_f32 v{lsum}, v{lsum}, v{lsum+1}')
    for i in range(U, NL):
        u = i - U
        A(f'    s_waitcnt vmcnt({min(D-1, NL-1-i)})')
        r = vR + 4 * (i % D)
        for j in range(4):
            A(f'    v_lshlrev_b32 v{vT+2*j}, 16, v{r+j}')
            A(f'    v_and_b32 v{vT+2*j+1}, s61, v{r+j}')
        if i + D < NL:
            issue(i + D)
        for j in range(8):
            A(f'    v_fmac_f32 v{vACC+j}, v{vS+u}, v{vT+j}')
    A(f'    v_mov_b32 v{lsum+1}, v{lsum}')
    A('    s_nop 1')
    for j in range(4):
        A(f'    v_permlane32_swap_b32 v{vACC+j}, v{vACC+4+j}')
    A(f'    v_permlane32_swap_b32 v{lsum}, v{lsum+1}')
    A('    s_nop 1')
    for j in range(4):
        A(f'    v_add_f32 v{vACC+j}, v{vACC+j}, v{vACC+4+j}')
    A(f'    v_add_f32 v{lsum}, v{lsum}, v{lsum+1}')
    A(f'    v_mov_b32 v{lsum+1}, v{lsum}')
    A('    s_nop 1')
    A(f'    v_permlane16_swap_b32 v{vACC}, v{vACC+2}')
    A(f'    v_permlane16_swap_b32 v{vACC+1}, v{vACC+3}')
    A(f'    v_permlane16_swap_b32 v{lsum}, v{lsum+1}')
    A('    s_nop 1')
    A(f'    v_add_f32 v{vACC}, v{vACC}, v{vACC+2}')
    A(f'    v_add_f32 v{vACC+1}, v{vACC+1}, v{vACC+3}')
    A(f'    v_add_f32 v{m+1}, v{lsum}, v{lsum+1}   ; wave l  (v{m}=m, v{m+1}=l)')
    t = vT
    A(f'    v_and_b32 v{t}, 15, v3')
    A(f'    v_lshlrev_b32 v{t}, 5, v{t}          ; c*32 bytes')
    A(f'    v_lshrrev_b32 v{t+1}, 4, v3')
    A(f'    v_lshl_add_u32 v{t}, v{t+1}, 3, v{t} ; + r*8')
    A('    s_lshl_b32 s62, s19, 9')
    A(f'    v_add_u32 v{t}, s62, v{t}')
    A(f'    ds_write_b64 v{t}, v[{vACC}:{vACC+1}]')
    A('    s_lshl_b32 s62, s19, 3')
    A(f'    s_add_u32 s62, s62, {lds_ml}')
    A(f'    v_mov_b32 v{t+2}, s62')
    A(f'    ds_write_b64 v{t+2}, v[{m}:{m+1}]')
    A('    s_waitcnt lgkmcnt(0)')
    A('    s_barrier')
    A('    s_cmp_lg_u32 s19, 0')
    A('    s_cbranch_scc1 L_done')
    if diag:
        A('    s_memrealtime s[92:93]')
    A(f'    v_and_b32 v{t}, {NW-1}, v3')
    A(f'    v_lshlrev_b32 v{t}, 3, v{t}')
    A(f'    ds_read_b64 v[{m}:{m+1}], v{t} offset:{lds_ml}')
    A(f'    v_lshlrev_b32 v{t+1}, 3, v3           ; lane*8')
    for w in range(NW):
        A(f'    ds_read_b64 v[{vR+2*w}:{vR+2*w+1}], v{t+1} offset:{w*512}')
    A(f'    s_waitcnt lgkmcnt({min(NW,15)})')
    M = m + 2
    A(f'    v_mov_b32 v{M}, v{m}')
    A('    s_nop 1')
    rots = [r for r in (8, 4, 2, 1) if r < NW]
    for rot in rots:
        A(f'    v_max_f32_dpp v{M}, v{M}, v{M} row_ror:{rot} row_mask:0xf bank_mask:0xf')
        A('    s_nop 1')
    F = m + 3
    A(f'    v_sub_f32 v{F}, v{m}, v{M}')
    A(f'    v_mul_f32 v{F}, s60, v{F}')
    A(f'    v_exp_f32 v{F}, v{F}')
    A('    s_nop 0')
    Lr = m + 4
    A(f'    v_mul_f32 v{Lr}, v{m+1}, v{F}')
    A('    s_nop 1')
    for rot in rots:
        A(f'    v_add_f32_dpp v{Lr}, v{Lr}, v{Lr} row_ror:{rot} row_mask:0xf bank_mask:0xf')
        A('    s_nop 1')
    for w in range(NW):
        A(f'    v_readlane_b32 s{64+w}, v{F}, {w}')
    A('    s_waitcnt lgkmcnt(0)')
    o = vACC
    assert vACC % 4 == 0
    A(f'    v_mul_f32 v{o}, s64, v{vR}')
    A(f'    v_mul_f32 v{o+1}, s64, v{vR+1}')
    for w in range(1, NW):
        A(f'    v_fmac_f32 v{o}, s{64+w}, v{vR+2*w}')
        A(f'    v_fmac_f32 v{o+1}, s{64+w}, v{vR+2*w+1}')
    A(f'    v_mov_b32 v{o+2}, v{M}')
    A(f'    v_mov_b32 v{o+3}, v{Lr}')
    A(f'    s_mul_i32 s62, s17, {NSPLIT}')
    A('    s_add_u32 s63, s62, s18')
    A('    s_lshl_b32 s63, s63, 10')
    A('    s_lshl_b32 s62, s62, 10')
    A(f'    v_lshlrev_b32 v{t}, 4, v3             ; lane*16')
    A(f'    buffer_store_dwordx4 v[{o}:{o+3}], v{t}, s[56:59], s63 offen sc0 sc1')
    A('    s_waitcnt vmcnt(0)')
    if diag:
        A('    s_lshr_b32 s80, s17, 2')
        A('    s_lshl_b32 s80, s80, 2')
        A('    s_add_u32 s80, s80, 128')
        A('    s_and_b32 s81, s17, 3')
        A('    s_lshl_b32 s81, s81, 3              ; shift')
    else:
        A('    s_lshr_b32 s80, s17, 1')
        A('    s_lshl_b32 s80, s80, 2')
        A('    s_and_b32 s81, s17, 1')
        A('    s_lshl_b32 s81, s81, 4              ; shift')
    A('    s_lshl_b32 s82, 1, s81')
    A(f'    v_mov_b32 v{t+2}, s82')
    A(f'    v_mov_b32 v{t+3}, s80')
    A('    s_mov_b64 s[84:85], exec')
    A('    s_mov_b64 exec, 1')
    A(f'    buffer_atomic_add v{t+2}, v{t+3}, s[52:55], 0 offen sc0 sc1')
    A('    s_mov_b64 exec, s[84:85]')
    A('    s_waitcnt vmcnt(0)')
    A(f'    v_readfirstlane_b32 s83, v{t+2}')
    A('    s_nop 3')
    A('    s_lshr_b32 s83, s83, s81')
    A('    s_and_b32 s83, s83, 0xff' if diag else '    s_and_b32 s83, s83, 0xffff')
    A(f'    s_cmp_lg_u32 s83, {NSPLIT-1}')
    A('    s_cbranch_scc1 L_done')
    for sidx in range(NSPLIT):
        A(f'    buffer_load_dwordx4 v[{vR+4*sidx}:{vR+4*sidx+3}], v{t}, s[56:59], s62 offen offset:{sidx*1024} sc0 sc1')
    A('    s_waitcnt vmcnt(0)')
    A(f'    v_max_f32 v{M}, v{vR+2}, v{vR+6}')
    for sidx in range(2, NSPLIT):
        A(f'    v_max_f32 v{M}, v{M}, v{vR+4*sidx+2}')
    for sidx in range(NSPLIT):
        A(f'    v_sub_f32 v{vR+4*sidx+2}, v{vR+4*sidx+2}, v{M}')
        A(f'    v_mul_f32 v{vR+4*sidx+2}, s60, v{vR+4*sidx+2}')
        A(f'    v_exp_f32 v{vR+4*sidx+2}, v{vR+4*sidx+2}')
    A('    s_nop 0')
    A(f'    v_mul_f32 v{o}, v{vR}, v{vR+2}')
    A(f'    v_mul_f32 v{o+1}, v{vR+1}, v{vR+2}')
    A(f'    v_mul_f32 v{o+2}, v{vR+3}, v{vR+2}')
    for sidx in range(1, NSPLIT):
        b = vR + 4 * sidx
        A(f'    v_fmac_f32 v{o}, v{b}, v{b+2}')
        A(f'    v_fmac_f32 v{o+1}, v{b+1}, v{b+2}')
        A(f'    v_fmac_f32 v{o+2}, v{b+3}, v{b+2}')
    A(f'    v_rcp_f32 v{o+2}, v{o+2}')
    A('    s_nop 0')
    A(f'    v_mul_f32 v{o}, v{o}, v{o+2}')
    A(f'    v_mul_f32 v{o+1}, v{o+1}, v{o+2}')
    A(f'    v_cvt_pk_bf16_f32 v{o}, v{o}, v{o+1}')
    A(f'    v_lshlrev_b32 v{t+1}, 2, v3')
    A(f'    buffer_store_dword v{o}, v{t+1}, s[48:51], s22 offen')
    if diag:
        A('    s_waitcnt vmcnt(0)')
        A('    s_memrealtime s[94:95]')
        A('    s_waitcnt lgkmcnt(0)')
        A('    s_not_b32 s90, s90')
        A('    s_not_b32 s93, s92')
        A('    s_mov_b64 exec, 1')
        A(f'    v_mov_b32 v{t}, 0')
        A(f'    v_mov_b32 v{t+1}, s90')
        A(f'    v_mov_b32 v{t+2}, s92')
        A(f'    v_mov_b32 v{t+3}, s94')
        A(f'    v_mov_b32 v{t+4}, s93')
        A(f'    buffer_atomic_umax v{t+1}, v{t}, s[52:55], 0 offen sc1')
        A(f'    buffer_atomic_umax v{t+2}, v{t}, s[52:55], 0 offen offset:4 sc1')
        A(f'    buffer_atomic_umax v{t+3}, v{t}, s[52:55], 0 offen offset:8 sc1')
        A(f'    buffer_atomic_umax v{t+4}, v{t}, s[52:55], 0 offen offset:12 sc1')
    A('L_done:')
    A('    s_endpgm')
    A('.section .rodata,"a"')
    A('.p2align 6')
    A('.amdhsa_kernel standalone__softmax_full_bidir__decode_kernel')
    nva = (nv + 7) // 8 * 8
    A(f'  .amdhsa_next_free_vgpr {nva}')
    A('  .amdhsa_next_free_sgpr 96')
    A(f'  .amdhsa_accum_offset {nva}')
    A('  .amdhsa_group_segment_fixed_size 0')
    A('  .amdhsa_kernarg_size 48')
    A('  .amdhsa_user_sgpr_count 2')
    A('  .amdhsa_user_sgpr_kernarg_segment_ptr 1')
    A('  .amdhsa_system_sgpr_workgroup_id_x 1')
    A('.end_amdhsa_kernel')
    return '\n'.join(L) + '\n'

if __name__ == '__main__':
    import argparse
    ap = argparse.ArgumentParser()
    ap.add_argument('-o', default='standalone__softmax_full_bidir__decode.s')
    ap.add_argument('--nw', type=int, default=16)
    ap.add_argument('--nsplit', type=int, default=2)
    ap.add_argument('--d', type=int, default=16)
    ap.add_argument('--inter', type=int, default=0)
    ap.add_argument('--nt', type=int, default=1)
    ap.add_argument('--diag', type=int, default=0)
    a = ap.parse_args()
    open(a.o, 'w').write(gen(a.nw, a.nsplit, a.d, bool(a.inter), bool(a.nt), diag=bool(a.diag)))
```

```python
import sys, math, struct

def f2u(x):
    return struct.unpack('<I', struct.pack('<f', x))[0]

HEADER = open('standalone__softmax_full_bidir__decode.s.ref').read().split('; Override launch')[0]

def gen(NW=16, NSPLIT=2, D=16, inter=False, nt=True, pairx=True, diag=False, skip=None):
    NH = 128
    keys_wg = 4096 // NSPLIT
    U = keys_wg // NW // 4
    NWG = NH * NSPLIT
    wg_bytes = keys_wg * 256
    C = (128 ** -0.5) * math.log2(math.e)
    L = []
    A = L.append
    ntf = ' nt' if nt else ''
    vOFF = 1
    vQ = 4
    vS = 8
    vACC = vS + U
    vT = vACC + 8
    vX = vT + 8
    vR = (vX + 8 + 3) // 4 * 4
    nv = vR + 4 * D
    lds_ml = NW * 512
    lds = lds_ml + NW * 8
    lds = (lds + 255) // 256 * 256
    A(HEADER.rstrip('\n'))
    A('; Override launch geometry by editing the next line (default: block=256,')
    A(f'; @launch grid=({NWG},1,1) block=({NW*64},1,1) lds={lds}')
    A('.amdgcn_target "amdgcn-amd-amdhsa--gfx950"')
    A('.text')
    A('.globl standalone__softmax_full_bidir__decode_kernel')
    A('.p2align 8')
    A('.type standalone__softmax_full_bidir__decode_kernel,@function')
    A('standalone__softmax_full_bidir__decode_kernel:')
    A(f'    s_cmp_ge_u32 s2, {NWG}')
    A('    s_cbranch_scc1 L_done')
    if skip:
        A(f'    s_and_b32 s16, s2, {skip[0]}')
        A(f'    s_cmp_lg_u32 s16, {skip[1]}')
        A('    s_cbranch_scc1 L_done')
    A('    s_load_dwordx4 s[4:7], s[0:1], 0       ; q, k')
    A('    s_load_dwordx4 s[8:11], s[0:1], 16     ; v, out')
    A('    s_load_dwordx4 s[12:15], s[0:1], 32')
    if diag:
        A('    s_memrealtime s[90:91]')
    if pairx:
        A('    s_and_b32 s16, s2, 7')
        A('    s_lshr_b32 s17, s2, 3')
        A(f'    s_and_b32 s18, s17, {NSPLIT-1}       ; split')
        A(f'    s_lshr_b32 s17, s17, {int(math.log2(NSPLIT))}')
        A('    s_lshl_b32 s17, s17, 3')
        A('    s_add_u32 s17, s17, s16             ; head')
    else:
        A(f'    s_and_b32 s18, s2, {NSPLIT-1}')
        A(f'    s_lshr_b32 s17, s2, {int(math.log2(NSPLIT))}')
    A('    v_lshrrev_b32 v2, 6, v0')
    A('    v_and_b32 v3, 63, v0                ; lane')
    A('    v_readfirstlane_b32 s19, v2')
    A('    v_and_b32 v2, 15, v0')
    A('    v_lshlrev_b32 v2, 4, v2             ; (lane%16)*16')
    A('    s_lshl_b32 s20, s17, 20')
    A(f'    s_mul_i32 s21, s18, {wg_bytes}')
    A('    s_add_u32 s20, s20, s21')
    if inter:
        A('    s_lshl_b32 s21, s19, 10')
    else:
        A(f'    s_mul_i32 s21, s19, {U*1024}')
    A('    s_add_u32 s20, s20, s21')
    A(f'    v_lshlrev_b32 v{vOFF}, 4, v3')
    A(f'    v_add_u32 v{vOFF}, s20, v{vOFF}')
    A('    s_lshl_b32 s22, s17, 8')
    A('    s_waitcnt lgkmcnt(0)')
    A('    s_mov_b32 s24, s6')
    A('    s_mov_b32 s25, s7')
    A('    s_mov_b32 s26, 0x8000000')
    A('    s_mov_b32 s27, 0x00020000           ; K srd s[24:27]')
    A('    s_mov_b32 s28, s8')
    A('    s_mov_b32 s29, s9')
    A('    s_mov_b32 s30, 0x8000000')
    A('    s_mov_b32 s31, 0x00020000           ; V srd s[28:31]')
    A('    s_mov_b32 s32, s4')
    A('    s_mov_b32 s33, s5')
    A('    s_mov_b32 s34, 0x8000')
    A('    s_mov_b32 s35, 0x00020000           ; Q srd s[32:35]')
    A(f'    buffer_load_dwordx4 v[{vQ}:{vQ+3}], v2, s[32:35], s22 offen')
    ustep = NW * 1024 if inter else 1024
    NL = 2 * U
    def issue(i):
        srd = 's[24:27]' if i < U else 's[28:31]'
        u = i % U
        off = u * ustep
        r = vR + 4 * (i % D)
        imm = off % 4096
        so = off - imm
        sreg = 40 + (i % 8)
        if so == 0:
            A(f'    buffer_load_dwordx4 v[{r}:{r+3}], v{vOFF}, {srd}, 0 offen offset:{imm}{ntf}')
        else:
            A(f'    s_mov_b32 s{sreg}, {so}')
            A(f'    buffer_load_dwordx4 v[{r}:{r+3}], v{vOFF}, {srd}, s{sreg} offen offset:{imm}{ntf}')
    for i in range(min(D, NL)):
        issue(i)
    A('    s_mov_b32 s48, s10')
    A('    s_mov_b32 s49, s11')
    A('    s_mov_b32 s50, 0x8000')
    A('    s_mov_b32 s51, 0x00020000')
    A('    s_mov_b32 s52, s12')
    A('    s_mov_b32 s53, s13')
    A('    s_mov_b32 s54, 256')
    A('    s_mov_b32 s55, 0x00020000')
    A('    s_mov_b32 s56, s14')
    A('    s_mov_b32 s57, s15')
    A(f'    s_mov_b32 s58, {NWG*1024 if diag != 2 else 0x200000}')
    A('    s_mov_b32 s59, 0x00020000')
    A(f'    s_mov_b32 s60, 0x{f2u(C):08x}       ; scale*log2e')
    A('    s_mov_b32 s61, 0xffff0000')
    for j in range(8):
        A(f'    v_mov_b32 v{vACC+j}, 0')
    def dpp_rounds(g):
        for rot in (8, 4, 2, 1):
            for u in range(4*g, 4*g+4):
                A(f'    v_add_f32_dpp v{vS+u}, v{vS+u}, v{vS+u} row_ror:{rot} row_mask:0xf bank_mask:0xf')
    for i in range(U):
        A(f'    s_waitcnt vmcnt({min(D-1, NL-1-i)})')
        r = vR + 4 * (i % D)
        A(f'    v_dot2_f32_bf16 v{vS+i}, v{r}, v{vQ}, 0')
        for j in range(1, 4):
            A(f'    v_dot2_f32_bf16 v{vS+i}, v{r+j}, v{vQ+j}, v{vS+i}')
        if i + D < NL:
            issue(i + D)
        if i % 4 == 0 and i >= 4:
            dpp_rounds(i // 4 - 1)
    A('    s_nop 3')
    dpp_rounds(U // 4 - 1)
    if diag == 2:
        A('    s_memrealtime s[88:89]')
    m = vX
    A(f'    v_max3_f32 v{m}, v{vS}, v{vS+1}, v{vS+2}')
    k = 3
    while k + 1 < U:
        A(f'    v_max3_f32 v{m}, v{m}, v{vS+k}, v{vS+k+1}')
        k += 2
    if k < U:
        A(f'    v_max_f32 v{m}, v{m}, v{vS+k}')
    A(f'    v_mov_b32 v{m+1}, v{m}')
    A('    s_nop 1')
    A(f'    v_permlane32_swap_b32 v{m}, v{m+1}')
    A('    s_nop 1')
    A(f'    v_max_f32 v{m}, v{m}, v{m+1}')
    A(f'    v_mov_b32 v{m+1}, v{m}')
    A('    s_nop 1')
    A(f'    v_permlane16_swap_b32 v{m}, v{m+1}')
    A('    s_nop 1')
    A(f'    v_max_f32 v{m}, v{m}, v{m+1}')
    A(f'    v_mul_f32 v{m+1}, s60, v{m}')
    for u in range(U):
        A(f'    v_fma_f32 v{vS+u}, v{vS+u}, s60, -v{m+1}')
    for u in range(U):
        A(f'    v_exp_f32 v{vS+u}, v{vS+u}')
    lsum = m + 2
    A('    s_nop 0')
    A(f'    v_add_f32 v{lsum}, v{vS}, v{vS+1}')
    A(f'    v_add_f32 v{lsum+1}, v{vS+2}, v{vS+3}')
    for u in range(4, U, 2):
        A(f'    v_add_f32 v{lsum}, v{lsum}, v{vS+u}')
        A(f'    v_add_f32 v{lsum+1}, v{lsum+1}, v{vS+u+1}')
    A(f'    v_add_f32 v{lsum}, v{lsum}, v{lsum+1}')
    for i in range(U, NL):
        u = i - U
        A(f'    s_waitcnt vmcnt({min(D-1, NL-1-i)})')
        r = vR + 4 * (i % D)
        for j in range(4):
            A(f'    v_lshlrev_b32 v{vT+2*j}, 16, v{r+j}')
            A(f'    v_and_b32 v{vT+2*j+1}, s61, v{r+j}')
        if i + D < NL:
            issue(i + D)
        for j in range(8):
            A(f'    v_fmac_f32 v{vACC+j}, v{vS+u}, v{vT+j}')
    A(f'    v_mov_b32 v{lsum+1}, v{lsum}')
    A('    s_nop 1')
    for j in range(4):
        A(f'    v_permlane32_swap_b32 v{vACC+j}, v{vACC+4+j}')
    A(f'    v_permlane32_swap_b32 v{lsum}, v{lsum+1}')
    A('    s_nop 1')
    for j in range(4):
        A(f'    v_add_f32 v{vACC+j}, v{vACC+j}, v{vACC+4+j}')
    A(f'    v_add_f32 v{lsum}, v{lsum}, v{lsum+1}')
    A(f'    v_mov_b32 v{lsum+1}, v{lsum}')
    A('    s_nop 1')
    A(f'    v_permlane16_swap_b32 v{vACC}, v{vACC+2}')
    A(f'    v_permlane16_swap_b32 v{vACC+1}, v{vACC+3}')
    A(f'    v_permlane16_swap_b32 v{lsum}, v{lsum+1}')
    A('    s_nop 1')
    A(f'    v_add_f32 v{vACC}, v{vACC}, v{vACC+2}')
    A(f'    v_add_f32 v{vACC+1}, v{vACC+1}, v{vACC+3}')
    A(f'    v_add_f32 v{m+1}, v{lsum}, v{lsum+1}   ; wave l  (v{m}=m, v{m+1}=l)')
    t = vT
    A(f'    v_and_b32 v{t}, 15, v3')
    A(f'    v_lshlrev_b32 v{t}, 5, v{t}          ; c*32 bytes')
    A(f'    v_lshrrev_b32 v{t+1}, 4, v3')
    A(f'    v_lshl_add_u32 v{t}, v{t+1}, 3, v{t} ; + r*8')
    A('    s_lshl_b32 s62, s19, 9')
    A(f'    v_add_u32 v{t}, s62, v{t}')
    A(f'    ds_write_b64 v{t}, v[{vACC}:{vACC+1}]')
    A('    s_lshl_b32 s62, s19, 3')
    A(f'    s_add_u32 s62, s62, {lds_ml}')
    A(f'    v_mov_b32 v{t+2}, s62')
    A(f'    ds_write_b64 v{t+2}, v[{m}:{m+1}]')
    A('    s_waitcnt lgkmcnt(0)')
    A('    s_barrier')
    A('    s_cmp_lg_u32 s19, 0')
    A('    s_cbranch_scc1 L_done')
    if diag:
        A('    s_memrealtime s[92:93]')
    if diag == 2:
        A('    s_getreg_b32 s94, hwreg(HW_REG_XCC_ID)')
        A('    s_getreg_b32 s95, hwreg(HW_REG_HW_ID)')
        A('    s_waitcnt lgkmcnt(0)')
        A('    s_lshl_b32 s93, s2, 4')
        A('    s_add_u32 s93, s93, 0x100000')
        A(f'    v_mov_b32 v{vR+40}, s90')
        A(f'    v_mov_b32 v{vR+41}, s92')
        A(f'    v_mov_b32 v{vR+42}, s94')
        A(f'    v_mov_b32 v{vR+43}, s88')
        A(f'    v_mov_b32 v{vT}, 0')
        A('    s_mov_b64 s[84:85], exec')
        A('    s_mov_b64 exec, 1')
        A(f'    buffer_store_dwordx4 v[{vR+40}:{vR+43}], v{vT}, s[56:59], s93 offen')
        A('    s_mov_b64 exec, s[84:85]')
    A(f'    v_and_b32 v{t}, {NW-1}, v3')
    A(f'    v_lshlrev_b32 v{t}, 3, v{t}')
    A(f'    ds_read_b64 v[{m}:{m+1}], v{t} offset:{lds_ml}')
    A(f'    v_lshlrev_b32 v{t+1}, 3, v3           ; lane*8')
    for w in range(NW):
        A(f'    ds_read_b64 v[{vR+2*w}:{vR+2*w+1}], v{t+1} offset:{w*512}')
    A(f'    s_waitcnt lgkmcnt({min(NW,15)})')
    M = m + 2
    A(f'    v_mov_b32 v{M}, v{m}')
    A('    s_nop 1')
    rots = [r for r in (8, 4, 2, 1) if r < NW]
    for rot in rots:
        A(f'    v_max_f32_dpp v{M}, v{M}, v{M} row_ror:{rot} row_mask:0xf bank_mask:0xf')
        A('    s_nop 1')
    F = m + 3
    A(f'    v_sub_f32 v{F}, v{m}, v{M}')
    A(f'    v_mul_f32 v{F}, s60, v{F}')
    A(f'    v_exp_f32 v{F}, v{F}')
    A('    s_nop 0')
    Lr = m + 4
    A(f'    v_mul_f32 v{Lr}, v{m+1}, v{F}')
    A('    s_nop 1')
    for rot in rots:
        A(f'    v_add_f32_dpp v{Lr}, v{Lr}, v{Lr} row_ror:{rot} row_mask:0xf bank_mask:0xf')
        A('    s_nop 1')
    for w in range(NW):
        A(f'    v_readlane_b32 s{64+w}, v{F}, {w}')
    A('    s_waitcnt lgkmcnt(0)')
    o = vACC
    assert vACC % 4 == 0
    A(f'    v_mul_f32 v{o}, s64, v{vR}')
    A(f'    v_mul_f32 v{o+1}, s64, v{vR+1}')
    for w in range(1, NW):
        A(f'    v_fmac_f32 v{o}, s{64+w}, v{vR+2*w}')
        A(f'    v_fmac_f32 v{o+1}, s{64+w}, v{vR+2*w+1}')
    A(f'    v_mov_b32 v{o+2}, v{M}')
    A(f'    v_mov_b32 v{o+3}, v{Lr}')
    A(f'    s_mul_i32 s62, s17, {NSPLIT}')
    A('    s_add_u32 s63, s62, s18')
    A('    s_lshl_b32 s63, s63, 10')
    A('    s_lshl_b32 s62, s62, 10')
    A(f'    v_lshlrev_b32 v{t}, 4, v3             ; lane*16')
    A(f'    buffer_store_dwordx4 v[{o}:{o+3}], v{t}, s[56:59], s63 offen sc0 sc1')
    A('    s_waitcnt vmcnt(0)')
    if diag:
        A('    s_lshr_b32 s80, s17, 2')
        A('    s_lshl_b32 s80, s80, 2')
        A('    s_add_u32 s80, s80, 128')
        A('    s_and_b32 s81, s17, 3')
        A('    s_lshl_b32 s81, s81, 3              ; shift')
    else:
        A('    s_lshr_b32 s80, s17, 1')
        A('    s_lshl_b32 s80, s80, 2')
        A('    s_and_b32 s81, s17, 1')
        A('    s_lshl_b32 s81, s81, 4              ; shift')
    A('    s_lshl_b32 s82, 1, s81')
    A(f'    v_mov_b32 v{t+2}, s82')
    A(f'    v_mov_b32 v{t+3}, s80')
    A('    s_mov_b64 s[84:85], exec')
    A('    s_mov_b64 exec, 1')
    A(f'    buffer_atomic_add v{t+2}, v{t+3}, s[52:55], 0 offen sc0 sc1')
    A('    s_mov_b64 exec, s[84:85]')
    A('    s_waitcnt vmcnt(0)')
    A(f'    v_readfirstlane_b32 s83, v{t+2}')
    A('    s_nop 3')
    A('    s_lshr_b32 s83, s83, s81')
    A('    s_and_b32 s83, s83, 0xff' if diag else '    s_and_b32 s83, s83, 0xffff')
    A(f'    s_cmp_lg_u32 s83, {NSPLIT-1}')
    A('    s_cbranch_scc1 L_done')
    for sidx in range(NSPLIT):
        A(f'    buffer_load_dwordx4 v[{vR+4*sidx}:{vR+4*sidx+3}], v{t}, s[56:59], s62 offen offset:{sidx*1024} sc0 sc1')
    A('    s_waitcnt vmcnt(0)')
    A(f'    v_max_f32 v{M}, v{vR+2}, v{vR+6}')
    for sidx in range(2, NSPLIT):
        A(f'    v_max_f32 v{M}, v{M}, v{vR+4*sidx+2}')
    for sidx in range(NSPLIT):
        A(f'    v_sub_f32 v{vR+4*sidx+2}, v{vR+4*sidx+2}, v{M}')
        A(f'    v_mul_f32 v{vR+4*sidx+2}, s60, v{vR+4*sidx+2}')
        A(f'    v_exp_f32 v{vR+4*sidx+2}, v{vR+4*sidx+2}')
    A('    s_nop 0')
    A(f'    v_mul_f32 v{o}, v{vR}, v{vR+2}')
    A(f'    v_mul_f32 v{o+1}, v{vR+1}, v{vR+2}')
    A(f'    v_mul_f32 v{o+2}, v{vR+3}, v{vR+2}')
    for sidx in range(1, NSPLIT):
        b = vR + 4 * sidx
        A(f'    v_fmac_f32 v{o}, v{b}, v{b+2}')
        A(f'    v_fmac_f32 v{o+1}, v{b+1}, v{b+2}')
        A(f'    v_fmac_f32 v{o+2}, v{b+3}, v{b+2}')
    A(f'    v_rcp_f32 v{o+2}, v{o+2}')
    A('    s_nop 0')
    A(f'    v_mul_f32 v{o}, v{o}, v{o+2}')
    A(f'    v_mul_f32 v{o+1}, v{o+1}, v{o+2}')
    A(f'    v_cvt_pk_bf16_f32 v{o}, v{o}, v{o+1}')
    A(f'    v_lshlrev_b32 v{t+1}, 2, v3')
    A(f'    buffer_store_dword v{o}, v{t+1}, s[48:51], s22 offen')
    if diag:
        A('    s_waitcnt vmcnt(0)')
        A('    s_memrealtime s[94:95]')
        A('    s_waitcnt lgkmcnt(0)')
        A('    s_not_b32 s90, s90')
        A('    s_not_b32 s93, s92')
        A('    s_mov_b64 exec, 1')
        A(f'    v_mov_b32 v{t}, 0')
        A(f'    v_mov_b32 v{t+1}, s90')
        A(f'    v_mov_b32 v{t+2}, s92')
        A(f'    v_mov_b32 v{t+3}, s94')
        A(f'    v_mov_b32 v{t+4}, s93')
        A(f'    buffer_atomic_umax v{t+1}, v{t}, s[52:55], 0 offen sc1')
        A(f'    buffer_atomic_umax v{t+2}, v{t}, s[52:55], 0 offen offset:4 sc1')
        A(f'    buffer_atomic_umax v{t+3}, v{t}, s[52:55], 0 offen offset:8 sc1')
        A(f'    buffer_atomic_umax v{t+4}, v{t}, s[52:55], 0 offen offset:12 sc1')
    A('L_done:')
    A('    s_endpgm')
    A('.section .rodata,"a"')
    A('.p2align 6')
    A('.amdhsa_kernel standalone__softmax_full_bidir__decode_kernel')
    nva = (nv + 7) // 8 * 8
    A(f'  .amdhsa_next_free_vgpr {nva}')
    A('  .amdhsa_next_free_sgpr 96')
    A(f'  .amdhsa_accum_offset {nva}')
    A('  .amdhsa_group_segment_fixed_size 0')
    A('  .amdhsa_kernarg_size 48')
    A('  .amdhsa_user_sgpr_count 2')
    A('  .amdhsa_user_sgpr_kernarg_segment_ptr 1')
    A('  .amdhsa_system_sgpr_workgroup_id_x 1')
    A('.end_amdhsa_kernel')
    return '\n'.join(L) + '\n'

if __name__ == '__main__':
    import argparse
    ap = argparse.ArgumentParser()
    ap.add_argument('-o', default='standalone__softmax_full_bidir__decode.s')
    ap.add_argument('--nw', type=int, default=16)
    ap.add_argument('--nsplit', type=int, default=2)
    ap.add_argument('--d', type=int, default=16)
    ap.add_argument('--inter', type=int, default=0)
    ap.add_argument('--nt', type=int, default=1)
    ap.add_argument('--diag', type=int, default=0)
    ap.add_argument('--pairx', type=int, default=1)
    ap.add_argument('--skip', type=str, default='')
    a = ap.parse_args()
    open(a.o, 'w').write(gen(a.nw, a.nsplit, a.d, bool(a.inter), bool(a.nt), diag=a.diag, pairx=bool(a.pairx), skip=tuple(int(x) for x in a.skip.split(',')) if a.skip else None))
```

```python
import sys, math, struct

def f2u(x):
    return struct.unpack('<I', struct.pack('<f', x))[0]

HEADER = open('standalone__softmax_full_bidir__decode.s.ref').read().split('; Override launch')[0]

def gen(NW=8, D=16, UM=16, nt=True, diag=0, pol=0):
    NH = 128
    NSPLIT = 2
    UT = 1024 // NW
    US = (UT - UM) // 2
    assert 2 * US + UM == UT
    UB = US + UM
    NWG = NH * NSPLIT
    C = (128 ** -0.5) * math.log2(math.e)
    L = []
    A = L.append
    ntf = ' nt' if nt else ''
    vOFF = 1
    vOF2 = 2
    vQ = 4
    vS = 8
    vACC = (vS + UB + 3) // 4 * 4
    vT = vACC + 8
    vX = vT + 8
    vR = (vX + 8 + 3) // 4 * 4
    nv = vR + 4 * D
    assert 4 * D >= 2 * NW
    lds_ml = NW * 512
    lds_role = lds_ml + NW * 8
    lds = (lds_role + 4 + 255) // 256 * 256
    A(HEADER.rstrip('\n'))
    A('; Override launch geometry by editing the next line (default: block=256,')
    A(f'; @launch grid=({NWG},1,1) block=({NW*64},1,1) lds={lds}')
    A('.amdgcn_target "amdgcn-amd-amdhsa--gfx950"')
    A('.text')
    A('.globl standalone__softmax_full_bidir__decode_kernel')
    A('.p2align 8')
    A('.type standalone__softmax_full_bidir__decode_kernel,@function')
    A('standalone__softmax_full_bidir__decode_kernel:')
    A(f'    s_cmp_ge_u32 s2, {NWG}')
    A('    s_cbranch_scc1 L_done')
    A('    s_load_dwordx4 s[4:7], s[0:1], 0       ; q, k')
    A('    s_load_dwordx4 s[8:11], s[0:1], 16     ; v, out')
    A('    s_load_dwordx4 s[12:15], s[0:1], 32')
    if diag:
        A('    s_memrealtime s[90:91]')
    A('    s_and_b32 s18, s2, 1')
    A('    s_lshr_b32 s17, s2, 1               ; head')
    A('    v_lshrrev_b32 v2, 6, v0')
    A('    v_and_b32 v3, 63, v0                ; lane')
    A('    v_readfirstlane_b32 s19, v2')
    A(f'    v_and_b32 v{vT}, 15, v0')
    A(f'    v_lshlrev_b32 v{vT}, 4, v{vT}         ; (lane%16)*16')
    A('    s_lshl_b32 s20, s17, 20')
    A(f'    s_mul_i32 s21, s18, {NW*(US+UM)*1024}')
    A('    s_add_u32 s21, s20, s21')
    A(f'    s_mul_i32 s23, s19, {US*1024}')
    A('    s_add_u32 s21, s21, s23')
    A(f'    s_mul_i32 s23, s19, {UM*1024}')
    A(f'    s_add_u32 s23, s23, {NW*US*1024}')
    A('    s_add_u32 s23, s23, s20')
    A(f'    v_lshlrev_b32 v{vOFF}, 4, v3')
    A(f'    v_add_u32 v{vOF2}, s23, v{vOFF}')
    A(f'    v_add_u32 v{vOFF}, s21, v{vOFF}')
    A('    s_lshl_b32 s22, s17, 8')
    A('    s_lshr_b32 s80, s17, 1')
    A('    s_lshl_b32 s80, s80, 2')
    A('    s_and_b32 s81, s17, 1')
    A('    s_lshl_b32 s81, s81, 4              ; shift')
    A('    s_getreg_b32 s86, hwreg(HW_REG_XCC_ID)')
    A('    s_and_b32 s86, s86, 1')
    if pol == 0:
        A('    s_xor_b32 s86, s86, 1')
    A('    s_waitcnt lgkmcnt(0)')
    A('    s_mov_b32 s24, s6')
    A('    s_mov_b32 s25, s7')
    A('    s_mov_b32 s26, 0x8000000')
    A('    s_mov_b32 s27, 0x00020000           ; K srd s[24:27]')
    A('    s_mov_b32 s28, s8')
    A('    s_mov_b32 s29, s9')
    A('    s_mov_b32 s30, 0x8000000')
    A('    s_mov_b32 s31, 0x00020000           ; V srd s[28:31]')
    A('    s_mov_b32 s32, s4')
    A('    s_mov_b32 s33, s5')
    A('    s_mov_b32 s34, 0x8000')
    A('    s_mov_b32 s35, 0x00020000           ; Q srd s[32:35]')
    A('    s_mov_b32 s52, s12')
    A('    s_mov_b32 s53, s13')
    A('    s_mov_b32 s54, 256')
    A('    s_mov_b32 s55, 0x00020000')
    A('    s_cmp_lg_u32 s19, 0')
    A('    s_cbranch_scc1 L_norole')
    A('    s_lshl_b32 s82, s86, 9')
    A('    s_add_u32 s82, s82, 0x100')
    A('    s_lshl_b32 s82, s82, s81')
    A(f'    v_mov_b32 v{vX+6}, s82')
    A(f'    v_mov_b32 v{vX+7}, s80')
    A('    s_mov_b64 exec, 1')
    A(f'    buffer_atomic_add v{vX+6}, v{vX+7}, s[52:55], 0 offen sc0 sc1')
    A('    s_mov_b64 exec, -1')
    A('L_norole:')
    A(f'    buffer_load_dwordx4 v[{vQ}:{vQ+3}], v{vT}, s[32:35], s22 offen')
    seqS = [('K', vOFF, u) for u in range(US)] + [('V', vOFF, u) for u in range(US)]
    seqB = [('K', vOFF, u) for u in range(US)] + [('K', vOF2, u) for u in range(UM)] + \
           [('V', vOFF, u) for u in range(US)] + [('V', vOF2, u) for u in range(UM)]
    def issue(seq, i):
        kind, vo, u = seq[i]
        srd = 's[24:27]' if kind == 'K' else 's[28:31]'
        off = u * 1024
        r = vR + 4 * (i % D)
        imm = off % 4096
        so = off - imm
        sreg = 40 + (i % 8)
        if so == 0:
            A(f'    buffer_load_dwordx4 v[{r}:{r+3}], v{vo}, {srd}, 0 offen offset:{imm}{ntf}')
        else:
            A(f'    s_mov_b32 s{sreg}, {so}')
            A(f'    buffer_load_dwordx4 v[{r}:{r+3}], v{vo}, {srd}, s{sreg} offen offset:{imm}{ntf}')
    for i in range(D):
        issue(seqS, i)
    A('    s_mov_b32 s48, s10')
    A('    s_mov_b32 s49, s11')
    A('    s_mov_b32 s50, 0x8000')
    A('    s_mov_b32 s51, 0x00020000')
    A('    s_mov_b32 s56, s14')
    A('    s_mov_b32 s57, s15')
    A(f'    s_mov_b32 s58, {NWG*1024 if diag != 2 else 0x200000}')
    A('    s_mov_b32 s59, 0x00020000')
    A(f'    s_mov_b32 s60, 0x{f2u(C):08x}       ; scale*log2e')
    A('    s_mov_b32 s61, 0xffff0000')
    for j in range(8):
        A(f'    v_mov_b32 v{vACC+j}, 0')
    A(f'    v_mov_b32 v{vX+5}, {lds_role}')
    A('    s_cmp_lg_u32 s19, 0')
    A('    s_cbranch_scc1 L_rolebar')
    A(f'    s_waitcnt vmcnt({D+1})')
    A(f'    v_readfirstlane_b32 s83, v{vX+6}')
    A('    s_nop 3')
    A('    s_lshr_b32 s83, s83, s81')
    A('    s_lshr_b32 s83, s83, 8')
    A('    s_and_b32 s83, s83, 3')
    A('    s_lshr_b32 s87, s83, 1')
    A('    s_xor_b32 s87, s87, 1')
    A('    s_cmp_eq_u32 s83, 0')
    A('    s_cselect_b32 s87, s86, s87')
    A(f'    v_mov_b32 v{vX+6}, s87')
    A(f'    ds_write_b32 v{vX+5}, v{vX+6}')
    A('    s_waitcnt lgkmcnt(0)')
    A('L_rolebar:')
    A('    s_barrier')
    A(f'    ds_read_b32 v{vX+6}, v{vX+5}')
    state = {'pend': []}
    def dpp_flush(force=False):
        p = state['pend']
        if not p:
            return
        for rot in (8, 4, 2, 1):
            for u in p:
                A(f'    v_add_f32_dpp v{vS+u}, v{vS+u}, v{vS+u} row_ror:{rot} row_mask:0xf bank_mask:0xf')
            if len(p) < 3:
                A('    s_nop 1')
        state['pend'] = []
    def kstep(seq, i):
        NL = len(seq)
        A(f'    s_waitcnt vmcnt({min(D-1, NL-1-i)})')
        r = vR + 4 * (i % D)
        A(f'    v_dot2_f32_bf16 v{vS+i}, v{r}, v{vQ}, 0')
        for j in range(1, 4):
            A(f'    v_dot2_f32_bf16 v{vS+i}, v{r+j}, v{vQ+j}, v{vS+i}')
        if i + D < NL:
            issue(seq, i + D)
        if len(state['pend']) >= 4:
            dpp_flush()
        state['pend'].append(i)
    m = vX
    lsum = m + 2
    def tail(seq, i0, U):
        NL = len(seq)
        for i in range(i0, U):
            kstep(seq, i)
        A('    s_nop 3')
        dpp_flush()
        if diag == 2:
            A('    s_memrealtime s[88:89]')
        A(f'    v_max3_f32 v{m}, v{vS}, v{vS+1}, v{vS+2}')
        k = 3
        while k + 1 < U:
            A(f'    v_max3_f32 v{m}, v{m}, v{vS+k}, v{vS+k+1}')
            k += 2
        if k < U:
            A(f'    v_max_f32 v{m}, v{m}, v{vS+k}')
        A(f'    v_mov_b32 v{m+1}, v{m}')
        A('    s_nop 1')
        A(f'    v_permlane32_swap_b32 v{m}, v{m+1}')
        A('    s_nop 1')
        A(f'    v_max_f32 v{m}, v{m}, v{m+1}')
        A(f'    v_mov_b32 v{m+1}, v{m}')
        A('    s_nop 1')
        A(f'    v_permlane16_swap_b32 v{m}, v{m+1}')
        A('    s_nop 1')
        A(f'    v_max_f32 v{m}, v{m}, v{m+1}')
        A(f'    v_mul_f32 v{m+1}, s60, v{m}')
        for u in range(U):
            A(f'    v_fma_f32 v{vS+u}, v{vS+u}, s60, -v{m+1}')
        for u in range(U):
            A(f'    v_exp_f32 v{vS+u}, v{vS+u}')
        A('    s_nop 0')
        A(f'    v_add_f32 v{lsum}, v{vS}, v{vS+1}')
        A(f'    v_add_f32 v{lsum+1}, v{vS+2}, v{vS+3}')
        for u in range(4, U, 2):
            A(f'    v_add_f32 v{lsum}, v{lsum}, v{vS+u}')
            A(f'    v_add_f32 v{lsum+1}, v{lsum+1}, v{vS+u+1}')
        A(f'    v_add_f32 v{lsum}, v{lsum}, v{lsum+1}')
        for i in range(U, NL):
            u = i - U
            A(f'    s_waitcnt vmcnt({min(D-1, NL-1-i)})')
            r = vR + 4 * (i % D)
            for j in range(4):
                A(f'    v_lshlrev_b32 v{vT+2*j}, 16, v{r+j}')
                A(f'    v_and_b32 v{vT+2*j+1}, s61, v{r+j}')
            if i + D < NL:
                issue(seq, i + D)
            for j in range(8):
                A(f'    v_fmac_f32 v{vACC+j}, v{vS+u}, v{vT+j}')
    i0 = US - D
    for i in range(i0):
        kstep(seqS, i)
    A('    s_waitcnt lgkmcnt(0)')
    A(f'    v_readfirstlane_b32 s87, v{vX+6}')
    A('    s_nop 3')
    A('    s_cmp_lg_u32 s87, 0')
    A('    s_cbranch_scc1 L_big')
    saved = list(state['pend'])
    tail(seqS, i0, US)
    A('    s_branch L_join')
    A('L_big:')
    state['pend'] = saved
    tail(seqB, i0, UB)
    A('L_join:')
    A(f'    v_mov_b32 v{lsum+1}, v{lsum}')
    A('    s_nop 1')
    for j in range(4):
        A(f'    v_permlane32_swap_b32 v{vACC+j}, v{vACC+4+j}')
    A(f'    v_permlane32_swap_b32 v{lsum}, v{lsum+1}')
    A('    s_nop 1')
    for j in range(4):
        A(f'    v_add_f32 v{vACC+j}, v{vACC+j}, v{vACC+4+j}')
    A(f'    v_add_f32 v{lsum}, v{lsum}, v{lsum+1}')
    A(f'    v_mov_b32 v{lsum+1}, v{lsum}')
    A('    s_nop 1')
    A(f'    v_permlane16_swap_b32 v{vACC}, v{vACC+2}')
    A(f'    v_permlane16_swap_b32 v{vACC+1}, v{vACC+3}')
    A(f'    v_permlane16_swap_b32 v{lsum}, v{lsum+1}')
    A('    s_nop 1')
    A(f'    v_add_f32 v{vACC}, v{vACC}, v{vACC+2}')
    A(f'    v_add_f32 v{vACC+1}, v{vACC+1}, v{vACC+3}')
    A(f'    v_add_f32 v{m+1}, v{lsum}, v{lsum+1}   ; wave l  (v{m}=m, v{m+1}=l)')
    t = vT
    A(f'    v_and_b32 v{t}, 15, v3')
    A(f'    v_lshlrev_b32 v{t}, 5, v{t}          ; c*32 bytes')
    A(f'    v_lshrrev_b32 v{t+1}, 4, v3')
    A(f'    v_lshl_add_u32 v{t}, v{t+1}, 3, v{t} ; + r*8')
    A('    s_lshl_b32 s62, s19, 9')
    A(f'    v_add_u32 v{t}, s62, v{t}')
    A(f'    ds_write_b64 v{t}, v[{vACC}:{vACC+1}]')
    A('    s_lshl_b32 s62, s19, 3')
    A(f'    s_add_u32 s62, s62, {lds_ml}')
    A(f'    v_mov_b32 v{t+2}, s62')
    A(f'    ds_write_b64 v{t+2}, v[{m}:{m+1}]')
    A('    s_waitcnt lgkmcnt(0)')
    A('    s_barrier')
    A('    s_cmp_lg_u32 s19, 0')
    A('    s_cbranch_scc1 L_done')
    if diag == 2:
        A('    s_memrealtime s[92:93]')
        A('    s_getreg_b32 s94, hwreg(HW_REG_XCC_ID)')
        A('    s_waitcnt lgkmcnt(0)')
        A('    s_lshl_b32 s93, s2, 4')
        A('    s_add_u32 s93, s93, 0x100000')
        A(f'    v_mov_b32 v{vR+40}, s90')
        A(f'    v_mov_b32 v{vR+41}, s92')
        A(f'    v_mov_b32 v{vR+42}, s94')
        A(f'    v_mov_b32 v{vR+43}, s88')
        A(f'    v_mov_b32 v{vT}, 0')
        A('    s_mov_b64 exec, 1')
        A(f'    buffer_store_dwordx4 v[{vR+40}:{vR+43}], v{vT}, s[56:59], s93 offen')
        A('    s_mov_b64 exec, -1')
    A(f'    v_and_b32 v{t}, {NW-1}, v3')
    A(f'    v_lshlrev_b32 v{t}, 3, v{t}')
    A(f'    ds_read_b64 v[{m}:{m+1}], v{t} offset:{lds_ml}')
    A(f'    v_lshlrev_b32 v{t+1}, 3, v3           ; lane*8')
    for w in range(NW):
        A(f'    ds_read_b64 v[{vR+2*w}:{vR+2*w+1}], v{t+1} offset:{w*512}')
    A(f'    s_waitcnt lgkmcnt({min(NW,15)})')
    M = m + 2
    A(f'    v_mov_b32 v{M}, v{m}')
    A('    s_nop 1')
    rots = [r for r in (8, 4, 2, 1) if r < NW]
    for rot in rots:
        A(f'    v_max_f32_dpp v{M}, v{M}, v{M} row_ror:{rot} row_mask:0xf bank_mask:0xf')
        A('    s_nop 1')
    F = m + 3
    A(f'    v_sub_f32 v{F}, v{m}, v{M}')
    A(f'    v_mul_f32 v{F}, s60, v{F}')
    A(f'    v_exp_f32 v{F}, v{F}')
    A('    s_nop 0')
    Lr = m + 4
    A(f'    v_mul_f32 v{Lr}, v{m+1}, v{F}')
    A('    s_nop 1')
    for rot in rots:
        A(f'    v_add_f32_dpp v{Lr}, v{Lr}, v{Lr} row_ror:{rot} row_mask:0xf bank_mask:0xf')
        A('    s_nop 1')
    for w in range(NW):
        A(f'    v_readlane_b32 s{64+w}, v{F}, {w}')
    A('    s_waitcnt lgkmcnt(0)')
    o = vACC
    assert vACC % 4 == 0
    A(f'    v_mul_f32 v{o}, s64, v{vR}')
    A(f'    v_mul_f32 v{o+1}, s64, v{vR+1}')
    for w in range(1, NW):
        A(f'    v_fmac_f32 v{o}, s{64+w}, v{vR+2*w}')
        A(f'    v_fmac_f32 v{o+1}, s{64+w}, v{vR+2*w+1}')
    A(f'    v_mov_b32 v{o+2}, v{M}')
    A(f'    v_mov_b32 v{o+3}, v{Lr}')
    A(f'    s_mul_i32 s62, s17, {NSPLIT}')
    A('    s_add_u32 s63, s62, s18')
    A('    s_lshl_b32 s63, s63, 10')
    A('    s_lshl_b32 s62, s62, 10')
    A(f'    v_lshlrev_b32 v{t}, 4, v3             ; lane*16')
    A(f'    buffer_store_dwordx4 v[{o}:{o+3}], v{t}, s[56:59], s63 offen sc0 sc1')
    A('    s_waitcnt vmcnt(0)')
    A('    s_lshl_b32 s82, 1, s81')
    A(f'    v_mov_b32 v{t+2}, s82')
    A(f'    v_mov_b32 v{t+3}, s80')
    A('    s_mov_b64 exec, 1')
    A(f'    buffer_atomic_add v{t+2}, v{t+3}, s[52:55], 0 offen sc0 sc1')
    A('    s_mov_b64 exec, -1')
    A('    s_waitcnt vmcnt(0)')
    A(f'    v_readfirstlane_b32 s83, v{t+2}')
    A('    s_nop 3')
    A('    s_lshr_b32 s83, s83, s81')
    A('    s_and_b32 s83, s83, 0xff')
    A(f'    s_cmp_lg_u32 s83, {NSPLIT-1}')
    A('    s_cbranch_scc1 L_done')
    for sidx in range(NSPLIT):
        A(f'    buffer_load_dwordx4 v[{vR+4*sidx}:{vR+4*sidx+3}], v{t}, s[56:59], s62 offen offset:{sidx*1024} sc0 sc1')
    A('    s_waitcnt vmcnt(0)')
    A(f'    v_max_f32 v{M}, v{vR+2}, v{vR+6}')
    for sidx in range(NSPLIT):
        A(f'    v_sub_f32 v{vR+4*sidx+2}, v{vR+4*sidx+2}, v{M}')
        A(f'    v_mul_f32 v{vR+4*sidx+2}, s60, v{vR+4*sidx+2}')
        A(f'    v_exp_f32 v{vR+4*sidx+2}, v{vR+4*sidx+2}')
    A('    s_nop 0')
    A(f'    v_mul_f32 v{o}, v{vR}, v{vR+2}')
    A(f'    v_mul_f32 v{o+1}, v{vR+1}, v{vR+2}')
    A(f'    v_mul_f32 v{o+2}, v{vR+3}, v{vR+2}')
    for sidx in range(1, NSPLIT):
        b = vR + 4 * sidx
        A(f'    v_fmac_f32 v{o}, v{b}, v{b+2}')
        A(f'    v_fmac_f32 v{o+1}, v{b+1}, v{b+2}')
        A(f'    v_fmac_f32 v{o+2}, v{b+3}, v{b+2}')
    A(f'    v_rcp_f32 v{o+2}, v{o+2}')
    A('    s_nop 0')
    A(f'    v_mul_f32 v{o}, v{o}, v{o+2}')
    A(f'    v_mul_f32 v{o+1}, v{o+1}, v{o+2}')
    A(f'    v_cvt_pk_bf16_f32 v{o}, v{o}, v{o+1}')
    A(f'    v_lshlrev_b32 v{t+1}, 2, v3')
    A(f'    buffer_store_dword v{o}, v{t+1}, s[48:51], s22 offen')
    A('L_done:')
    A('    s_endpgm')
    A('.section .rodata,"a"')
    A('.p2align 6')
    A('.amdhsa_kernel standalone__softmax_full_bidir__decode_kernel')
    nva = (nv + 7) // 8 * 8
    A(f'  .amdhsa_next_free_vgpr {nva}')
    A('  .amdhsa_next_free_sgpr 96')
    A(f'  .amdhsa_accum_offset {nva}')
    A('  .amdhsa_group_segment_fixed_size 0')
    A('  .amdhsa_kernarg_size 48')
    A('  .amdhsa_user_sgpr_count 2')
    A('  .amdhsa_user_sgpr_kernarg_segment_ptr 1')
    A('  .amdhsa_system_sgpr_workgroup_id_x 1')
    A('.end_amdhsa_kernel')
    return '\n'.join(L) + '\n'

if __name__ == '__main__':
    import argparse
    ap = argparse.ArgumentParser()
    ap.add_argument('-o', default='r.s')
    ap.add_argument('--nw', type=int, default=8)
    ap.add_argument('--d', type=int, default=16)
    ap.add_argument('--um', type=int, default=16)
    ap.add_argument('--diag', type=int, default=0)
    ap.add_argument('--pol', type=int, default=0)
    a = ap.parse_args()
    open(a.o, 'w').write(gen(a.nw, a.d, a.um, True, a.diag, a.pol))
```

```python
import sys, math, struct

def f2u(x):
    return struct.unpack('<I', struct.pack('<f', x))[0]

HEADER = open('standalone__softmax_full_bidir__decode.s.ref').read().split('; Override launch')[0]

def gen(NW=8, D=16, UM=16, nt=True, diag=0, pol=0, rot=None, GU=4):
    NH = 128
    NSPLIT = 2
    UT = 1024 // NW
    US = (UT - UM) // 2
    assert 2 * US + UM == UT
    UB = US + UM
    NWG = NH * NSPLIT
    C = (128 ** -0.5) * math.log2(math.e)
    L = []
    A = L.append
    ntf = ' nt' if nt else ''
    vOFF = 1
    vOF2 = 2
    vQ = 4
    vS = 8
    vACC = (vS + UB + 3) // 4 * 4
    vT = vACC + 8
    vX = vT + 8
    vR = (vX + 8 + 3) // 4 * 4
    nv = vR + 4 * D
    assert 4 * D >= 2 * NW
    lds_ml = NW * 512
    lds_role = lds_ml + NW * 8
    lds = (lds_role + 4 + 255) // 256 * 256
    A(HEADER.rstrip('\n'))
    A('; Override launch geometry by editing the next line (default: block=256,')
    A(f'; @launch grid=({NWG},1,1) block=({NW*64},1,1) lds={lds}')
    A('.amdgcn_target "amdgcn-amd-amdhsa--gfx950"')
    A('.text')
    A('.globl standalone__softmax_full_bidir__decode_kernel')
    A('.p2align 8')
    A('.type standalone__softmax_full_bidir__decode_kernel,@function')
    A('standalone__softmax_full_bidir__decode_kernel:')
    A(f'    s_cmp_ge_u32 s2, {NWG}')
    A('    s_cbranch_scc1 L_done')
    A('    s_load_dwordx4 s[4:7], s[0:1], 0       ; q, k')
    A('    s_load_dwordx4 s[8:11], s[0:1], 16     ; v, out')
    A('    s_load_dwordx4 s[12:15], s[0:1], 32')
    if diag:
        A('    s_memrealtime s[90:91]')
    A('    s_and_b32 s18, s2, 1')
    A('    s_lshr_b32 s17, s2, 1               ; head')
    A('    v_lshrrev_b32 v2, 6, v0')
    A('    v_and_b32 v3, 63, v0                ; lane')
    A('    v_readfirstlane_b32 s19, v2')
    A(f'    v_and_b32 v{vT}, 15, v0')
    A(f'    v_lshlrev_b32 v{vT}, 4, v{vT}         ; (lane%16)*16')
    A('    s_lshl_b32 s20, s17, 20')
    A(f'    s_mul_i32 s21, s18, {NW*(US+UM)*1024}')
    A('    s_add_u32 s21, s20, s21')
    A(f'    s_mul_i32 s23, s19, {US*1024}')
    A('    s_add_u32 s21, s21, s23')
    A(f'    s_mul_i32 s23, s19, {UM*1024}')
    A(f'    s_add_u32 s23, s23, {NW*US*1024}')
    A('    s_add_u32 s23, s23, s20')
    A(f'    v_lshlrev_b32 v{vOFF}, 4, v3')
    A(f'    v_add_u32 v{vOF2}, s23, v{vOFF}')
    A(f'    v_add_u32 v{vOFF}, s21, v{vOFF}')
    A('    s_lshl_b32 s22, s17, 8')
    if rot:
        assert US % GU == 0
        G = US // GU
        A(f'    s_mul_i32 s36, s19, {rot[0]}')
        A(f'    s_mul_i32 s37, s17, {rot[1]}')
        A('    s_add_u32 s36, s36, s37')
        A(f'    s_mul_i32 s37, s18, {rot[2]}')
        A('    s_add_u32 s36, s36, s37')
        A(f'    s_mul_i32 s37, s36, {(1<<20)//G+1}')
        A('    s_lshr_b32 s37, s37, 20')
        A(f'    s_mul_i32 s37, s37, {G}')
        A('    s_sub_u32 s36, s36, s37')
        A(f'    s_mul_i32 s36, s36, {GU*1024}')
    A('    s_lshr_b32 s80, s17, 1')
    A('    s_lshl_b32 s80, s80, 2')
    A('    s_and_b32 s81, s17, 1')
    A('    s_lshl_b32 s81, s81, 4              ; shift')
    A('    s_getreg_b32 s86, hwreg(HW_REG_XCC_ID)')
    A('    s_and_b32 s86, s86, 1')
    if pol == 0:
        A('    s_xor_b32 s86, s86, 1')
    A('    s_waitcnt lgkmcnt(0)')
    A('    s_mov_b32 s24, s6')
    A('    s_mov_b32 s25, s7')
    A('    s_mov_b32 s26, 0x8000000')
    A('    s_mov_b32 s27, 0x00020000           ; K srd s[24:27]')
    A('    s_mov_b32 s28, s8')
    A('    s_mov_b32 s29, s9')
    A('    s_mov_b32 s30, 0x8000000')
    A('    s_mov_b32 s31, 0x00020000           ; V srd s[28:31]')
    A('    s_mov_b32 s32, s4')
    A('    s_mov_b32 s33, s5')
    A('    s_mov_b32 s34, 0x8000')
    A('    s_mov_b32 s35, 0x00020000           ; Q srd s[32:35]')
    A('    s_mov_b32 s52, s12')
    A('    s_mov_b32 s53, s13')
    A('    s_mov_b32 s54, 256')
    A('    s_mov_b32 s55, 0x00020000')
    A('    s_cmp_lg_u32 s19, 0')
    A('    s_cbranch_scc1 L_norole')
    A('    s_lshl_b32 s82, s86, 9')
    A('    s_add_u32 s82, s82, 0x100')
    A('    s_lshl_b32 s82, s82, s81')
    A(f'    v_mov_b32 v{vX+6}, s82')
    A(f'    v_mov_b32 v{vX+7}, s80')
    A('    s_mov_b64 exec, 1')
    A(f'    buffer_atomic_add v{vX+6}, v{vX+7}, s[52:55], 0 offen sc0 sc1')
    A('    s_mov_b64 exec, -1')
    A('L_norole:')
    A(f'    buffer_load_dwordx4 v[{vQ}:{vQ+3}], v{vT}, s[32:35], s22 offen')
    seqS = [('K', vOFF, u) for u in range(US)] + [('V', vOFF, u) for u in range(US)]
    seqB = [('K', vOFF, u) for u in range(US)] + [('K', vOF2, u) for u in range(UM)] + \
           [('V', vOFF, u) for u in range(US)] + [('V', vOF2, u) for u in range(UM)]
    def issue(seq, i):
        kind, vo, u = seq[i]
        srd = 's[24:27]' if kind == 'K' else 's[28:31]'
        off = u * 1024
        r = vR + 4 * (i % D)
        if rot and vo == vOFF:
            g = u // GU
            sc = 40 + (g % 8)
            sp = 40 + ((g - 1) % 8)
            if u % GU == 0:
                if g == 0:
                    A(f'    s_mov_b32 s{sc}, s36')
                else:
                    A(f'    s_add_u32 s{sc}, s{sp}, {GU*1024}')
                    A(f'    s_cmp_ge_u32 s{sc}, {US*1024}')
                    A(f'    s_cselect_b32 s{sc}, 0, s{sc}')
            A(f'    buffer_load_dwordx4 v[{r}:{r+3}], v{vo}, {srd}, s{sc} offen offset:{(u%GU)*1024}{ntf}')
            return
        imm = off % 4096
        so = off - imm
        sreg = (64 if rot else 40) + (i % 8)
        if so == 0:
            A(f'    buffer_load_dwordx4 v[{r}:{r+3}], v{vo}, {srd}, 0 offen offset:{imm}{ntf}')
        else:
            A(f'    s_mov_b32 s{sreg}, {so}')
            A(f'    buffer_load_dwordx4 v[{r}:{r+3}], v{vo}, {srd}, s{sreg} offen offset:{imm}{ntf}')
    for i in range(D):
        issue(seqS, i)
    A('    s_mov_b32 s48, s10')
    A('    s_mov_b32 s49, s11')
    A('    s_mov_b32 s50, 0x8000')
    A('    s_mov_b32 s51, 0x00020000')
    A('    s_mov_b32 s56, s14')
    A('    s_mov_b32 s57, s15')
    A(f'    s_mov_b32 s58, {NWG*1024 if diag != 2 else 0x200000}')
    A('    s_mov_b32 s59, 0x00020000')
    A(f'    s_mov_b32 s60, 0x{f2u(C):08x}       ; scale*log2e')
    A('    s_mov_b32 s61, 0xffff0000')
    for j in range(8):
        A(f'    v_mov_b32 v{vACC+j}, 0')
    A(f'    v_mov_b32 v{vX+5}, {lds_role}')
    A('    s_cmp_lg_u32 s19, 0')
    A('    s_cbranch_scc1 L_rolebar')
    A(f'    s_waitcnt vmcnt({D+1})')
    A(f'    v_readfirstlane_b32 s83, v{vX+6}')
    A('    s_nop 3')
    A('    s_lshr_b32 s83, s83, s81')
    A('    s_lshr_b32 s83, s83, 8')
    A('    s_and_b32 s83, s83, 3')
    A('    s_lshr_b32 s87, s83, 1')
    A('    s_xor_b32 s87, s87, 1')
    A('    s_cmp_eq_u32 s83, 0')
    A('    s_cselect_b32 s87, s86, s87')
    A(f'    v_mov_b32 v{vX+6}, s87')
    A(f'    ds_write_b32 v{vX+5}, v{vX+6}')
    A('    s_waitcnt lgkmcnt(0)')
    A('L_rolebar:')
    A('    s_barrier')
    A(f'    ds_read_b32 v{vX+6}, v{vX+5}')
    state = {'pend': []}
    def dpp_flush(force=False):
        p = state['pend']
        if not p:
            return
        for rot in (8, 4, 2, 1):
            for u in p:
                A(f'    v_add_f32_dpp v{vS+u}, v{vS+u}, v{vS+u} row_ror:{rot} row_mask:0xf bank_mask:0xf')
            if len(p) < 3:
                A('    s_nop 1')
        state['pend'] = []
    def kstep(seq, i):
        NL = len(seq)
        A(f'    s_waitcnt vmcnt({min(D-1, NL-1-i)})')
        r = vR + 4 * (i % D)
        A(f'    v_dot2_f32_bf16 v{vS+i}, v{r}, v{vQ}, 0')
        for j in range(1, 4):
            A(f'    v_dot2_f32_bf16 v{vS+i}, v{r+j}, v{vQ+j}, v{vS+i}')
        if i + D < NL:
            issue(seq, i + D)
        if len(state['pend']) >= 4:
            dpp_flush()
        state['pend'].append(i)
    m = vX
    lsum = m + 2
    def tail(seq, i0, U):
        NL = len(seq)
        for i in range(i0, U):
            kstep(seq, i)
        A('    s_nop 3')
        dpp_flush()
        if diag == 2:
            A('    s_memrealtime s[88:89]')
        A(f'    v_max3_f32 v{m}, v{vS}, v{vS+1}, v{vS+2}')
        k = 3
        while k + 1 < U:
            A(f'    v_max3_f32 v{m}, v{m}, v{vS+k}, v{vS+k+1}')
            k += 2
        if k < U:
            A(f'    v_max_f32 v{m}, v{m}, v{vS+k}')
        A(f'    v_mov_b32 v{m+1}, v{m}')
        A('    s_nop 1')
        A(f'    v_permlane32_swap_b32 v{m}, v{m+1}')
        A('    s_nop 1')
        A(f'    v_max_f32 v{m}, v{m}, v{m+1}')
        A(f'    v_mov_b32 v{m+1}, v{m}')
        A('    s_nop 1')
        A(f'    v_permlane16_swap_b32 v{m}, v{m+1}')
        A('    s_nop 1')
        A(f'    v_max_f32 v{m}, v{m}, v{m+1}')
        A(f'    v_mul_f32 v{m+1}, s60, v{m}')
        for u in range(U):
            A(f'    v_fma_f32 v{vS+u}, v{vS+u}, s60, -v{m+1}')
        for u in range(U):
            A(f'    v_exp_f32 v{vS+u}, v{vS+u}')
        A('    s_nop 0')
        A(f'    v_add_f32 v{lsum}, v{vS}, v{vS+1}')
        A(f'    v_add_f32 v{lsum+1}, v{vS+2}, v{vS+3}')
        for u in range(4, U, 2):
            A(f'    v_add_f32 v{lsum}, v{lsum}, v{vS+u}')
            A(f'    v_add_f32 v{lsum+1}, v{lsum+1}, v{vS+u+1}')
        A(f'    v_add_f32 v{lsum}, v{lsum}, v{lsum+1}')
        for i in range(U, NL):
            u = i - U
            A(f'    s_waitcnt vmcnt({min(D-1, NL-1-i)})')
            r = vR + 4 * (i % D)
            for j in range(4):
                A(f'    v_lshlrev_b32 v{vT+2*j}, 16, v{r+j}')
                A(f'    v_and_b32 v{vT+2*j+1}, s61, v{r+j}')
            if i + D < NL:
                issue(seq, i + D)
            for j in range(8):
                A(f'    v_fmac_f32 v{vACC+j}, v{vS+u}, v{vT+j}')
    i0 = US - D
    for i in range(i0):
        kstep(seqS, i)
    A('    s_waitcnt lgkmcnt(0)')
    A(f'    v_readfirstlane_b32 s87, v{vX+6}')
    A('    s_nop 3')
    if UM:
        A('    s_cmp_lg_u32 s87, 0')
        A('    s_cbranch_scc1 L_big')
    saved = list(state['pend'])
    tail(seqS, i0, US)
    if UM:
        A('    s_branch L_join')
        A('L_big:')
        state['pend'] = saved
        tail(seqB, i0, UB)
    A('L_join:')
    A(f'    v_mov_b32 v{lsum+1}, v{lsum}')
    A('    s_nop 1')
    for j in range(4):
        A(f'    v_permlane32_swap_b32 v{vACC+j}, v{vACC+4+j}')
    A(f'    v_permlane32_swap_b32 v{lsum}, v{lsum+1}')
    A('    s_nop 1')
    for j in range(4):
        A(f'    v_add_f32 v{vACC+j}, v{vACC+j}, v{vACC+4+j}')
    A(f'    v_add_f32 v{lsum}, v{lsum}, v{lsum+1}')
    A(f'    v_mov_b32 v{lsum+1}, v{lsum}')
    A('    s_nop 1')
    A(f'    v_permlane16_swap_b32 v{vACC}, v{vACC+2}')
    A(f'    v_permlane16_swap_b32 v{vACC+1}, v{vACC+3}')
    A(f'    v_permlane16_swap_b32 v{lsum}, v{lsum+1}')
    A('    s_nop 1')
    A(f'    v_add_f32 v{vACC}, v{vACC}, v{vACC+2}')
    A(f'    v_add_f32 v{vACC+1}, v{vACC+1}, v{vACC+3}')
    A(f'    v_add_f32 v{m+1}, v{lsum}, v{lsum+1}   ; wave l  (v{m}=m, v{m+1}=l)')
    t = vT
    A(f'    v_and_b32 v{t}, 15, v3')
    A(f'    v_lshlrev_b32 v{t}, 5, v{t}          ; c*32 bytes')
    A(f'    v_lshrrev_b32 v{t+1}, 4, v3')
    A(f'    v_lshl_add_u32 v{t}, v{t+1}, 3, v{t} ; + r*8')
    A('    s_lshl_b32 s62, s19, 9')
    A(f'    v_add_u32 v{t}, s62, v{t}')
    A(f'    ds_write_b64 v{t}, v[{vACC}:{vACC+1}]')
    A('    s_lshl_b32 s62, s19, 3')
    A(f'    s_add_u32 s62, s62, {lds_ml}')
    A(f'    v_mov_b32 v{t+2}, s62')
    A(f'    ds_write_b64 v{t+2}, v[{m}:{m+1}]')
    A('    s_waitcnt lgkmcnt(0)')
    A('    s_barrier')
    A('    s_cmp_lg_u32 s19, 0')
    A('    s_cbranch_scc1 L_done')
    if diag == 2:
        A('    s_memrealtime s[92:93]')
        A('    s_getreg_b32 s94, hwreg(HW_REG_XCC_ID)')
        A('    s_waitcnt lgkmcnt(0)')
        A('    s_lshl_b32 s93, s2, 4')
        A('    s_add_u32 s93, s93, 0x100000')
        A(f'    v_mov_b32 v{vR+40}, s90')
        A(f'    v_mov_b32 v{vR+41}, s92')
        A(f'    v_mov_b32 v{vR+42}, s94')
        A(f'    v_mov_b32 v{vR+43}, s88')
        A(f'    v_mov_b32 v{vT}, 0')
        A('    s_mov_b64 exec, 1')
        A(f'    buffer_store_dwordx4 v[{vR+40}:{vR+43}], v{vT}, s[56:59], s93 offen')
        A('    s_mov_b64 exec, -1')
    A(f'    v_and_b32 v{t}, {NW-1}, v3')
    A(f'    v_lshlrev_b32 v{t}, 3, v{t}')
    A(f'    ds_read_b64 v[{m}:{m+1}], v{t} offset:{lds_ml}')
    A(f'    v_lshlrev_b32 v{t+1}, 3, v3           ; lane*8')
    for w in range(NW):
        A(f'    ds_read_b64 v[{vR+2*w}:{vR+2*w+1}], v{t+1} offset:{w*512}')
    A(f'    s_waitcnt lgkmcnt({min(NW,15)})')
    M = m + 2
    A(f'    v_mov_b32 v{M}, v{m}')
    A('    s_nop 1')
    rots = [r for r in (8, 4, 2, 1) if r < NW]
    for rot in rots:
        A(f'    v_max_f32_dpp v{M}, v{M}, v{M} row_ror:{rot} row_mask:0xf bank_mask:0xf')
        A('    s_nop 1')
    F = m + 3
    A(f'    v_sub_f32 v{F}, v{m}, v{M}')
    A(f'    v_mul_f32 v{F}, s60, v{F}')
    A(f'    v_exp_f32 v{F}, v{F}')
    A('    s_nop 0')
    Lr = m + 4
    A(f'    v_mul_f32 v{Lr}, v{m+1}, v{F}')
    A('    s_nop 1')
    for rot in rots:
        A(f'    v_add_f32_dpp v{Lr}, v{Lr}, v{Lr} row_ror:{rot} row_mask:0xf bank_mask:0xf')
        A('    s_nop 1')
    for w in range(NW):
        A(f'    v_readlane_b32 s{64+w}, v{F}, {w}')
    A('    s_waitcnt lgkmcnt(0)')
    o = vACC
    assert vACC % 4 == 0
    A(f'    v_mul_f32 v{o}, s64, v{vR}')
    A(f'    v_mul_f32 v{o+1}, s64, v{vR+1}')
    for w in range(1, NW):
        A(f'    v_fmac_f32 v{o}, s{64+w}, v{vR+2*w}')
        A(f'    v_fmac_f32 v{o+1}, s{64+w}, v{vR+2*w+1}')
    A(f'    v_mov_b32 v{o+2}, v{M}')
    A(f'    v_mov_b32 v{o+3}, v{Lr}')
    A(f'    s_mul_i32 s62, s17, {NSPLIT}')
    A('    s_add_u32 s63, s62, s18')
    A('    s_lshl_b32 s63, s63, 10')
    A('    s_lshl_b32 s62, s62, 10')
    A(f'    v_lshlrev_b32 v{t}, 4, v3             ; lane*16')
    A(f'    buffer_store_dwordx4 v[{o}:{o+3}], v{t}, s[56:59], s63 offen sc0 sc1')
    A('    s_waitcnt vmcnt(0)')
    A('    s_lshl_b32 s82, 1, s81')
    A(f'    v_mov_b32 v{t+2}, s82')
    A(f'    v_mov_b32 v{t+3}, s80')
    A('    s_mov_b64 exec, 1')
    A(f'    buffer_atomic_add v{t+2}, v{t+3}, s[52:55], 0 offen sc0 sc1')
    A('    s_mov_b64 exec, -1')
    A('    s_waitcnt vmcnt(0)')
    A(f'    v_readfirstlane_b32 s83, v{t+2}')
    A('    s_nop 3')
    A('    s_lshr_b32 s83, s83, s81')
    A('    s_and_b32 s83, s83, 0xff')
    A(f'    s_cmp_lg_u32 s83, {NSPLIT-1}')
    A('    s_cbranch_scc1 L_done')
    for sidx in range(NSPLIT):
        A(f'    buffer_load_dwordx4 v[{vR+4*sidx}:{vR+4*sidx+3}], v{t}, s[56:59], s62 offen offset:{sidx*1024} sc0 sc1')
    A('    s_waitcnt vmcnt(0)')
    A(f'    v_max_f32 v{M}, v{vR+2}, v{vR+6}')
    for sidx in range(NSPLIT):
        A(f'    v_sub_f32 v{vR+4*sidx+2}, v{vR+4*sidx+2}, v{M}')
        A(f'    v_mul_f32 v{vR+4*sidx+2}, s60, v{vR+4*sidx+2}')
        A(f'    v_exp_f32 v{vR+4*sidx+2}, v{vR+4*sidx+2}')
    A('    s_nop 0')
    A(f'    v_mul_f32 v{o}, v{vR}, v{vR+2}')
    A(f'    v_mul_f32 v{o+1}, v{vR+1}, v{vR+2}')
    A(f'    v_mul_f32 v{o+2}, v{vR+3}, v{vR+2}')
    for sidx in range(1, NSPLIT):
        b = vR + 4 * sidx
        A(f'    v_fmac_f32 v{o}, v{b}, v{b+2}')
        A(f'    v_fmac_f32 v{o+1}, v{b+1}, v{b+2}')
        A(f'    v_fmac_f32 v{o+2}, v{b+3}, v{b+2}')
    A(f'    v_rcp_f32 v{o+2}, v{o+2}')
    A('    s_nop 0')
    A(f'    v_mul_f32 v{o}, v{o}, v{o+2}')
    A(f'    v_mul_f32 v{o+1}, v{o+1}, v{o+2}')
    A(f'    v_cvt_pk_bf16_f32 v{o}, v{o}, v{o+1}')
    A(f'    v_lshlrev_b32 v{t+1}, 2, v3')
    A(f'    buffer_store_dword v{o}, v{t+1}, s[48:51], s22 offen')
    A('L_done:')
    A('    s_endpgm')
    A('.section .rodata,"a"')
    A('.p2align 6')
    A('.amdhsa_kernel standalone__softmax_full_bidir__decode_kernel')
    nva = (nv + 7) // 8 * 8
    A(f'  .amdhsa_next_free_vgpr {nva}')
    A('  .amdhsa_next_free_sgpr 96')
    A(f'  .amdhsa_accum_offset {nva}')
    A('  .amdhsa_group_segment_fixed_size 0')
    A('  .amdhsa_kernarg_size 48')
    A('  .amdhsa_user_sgpr_count 2')
    A('  .amdhsa_user_sgpr_kernarg_segment_ptr 1')
    A('  .amdhsa_system_sgpr_workgroup_id_x 1')
    A('.end_amdhsa_kernel')
    return '\n'.join(L) + '\n'

if __name__ == '__main__':
    import argparse
    ap = argparse.ArgumentParser()
    ap.add_argument('-o', default='r.s')
    ap.add_argument('--nw', type=int, default=8)
    ap.add_argument('--d', type=int, default=16)
    ap.add_argument('--um', type=int, default=16)
    ap.add_argument('--diag', type=int, default=0)
    ap.add_argument('--pol', type=int, default=0)
    ap.add_argument('--rot', type=str, default='')
    ap.add_argument('--gu', type=int, default=4)
    a = ap.parse_args()
    open(a.o, 'w').write(gen(a.nw, a.d, a.um, True, a.diag, a.pol, tuple(int(x) for x in a.rot.split(',')) if a.rot else None, a.gu))
```

```python
import sys, math, struct

def f2u(x):
    return struct.unpack('<I', struct.pack('<f', x))[0]

HEADER = open('standalone__softmax_full_bidir__decode.s.ref').read().split('; Override launch')[0]

def gen(NW=8, D=16, UM=12, nt=True, diag=0, pol=0, rot=None, GU=4, XSTEP=4, pairs=((0,5),(6,3),(2,7),(4,1)), codes=(3,1,2,0,2,0,3,1)):
    NH = 128
    NSPLIT = 2
    UT = 1024 // NW
    US = (UT - UM) // 2
    assert 2 * US + UM == UT
    UB = US + UM
    NWG = NH * NSPLIT
    C = (128 ** -0.5) * math.log2(math.e)
    L = []
    A = L.append
    ntf = ' nt' if nt else ''
    vOFF = 1
    vOF2 = 2
    vQ = 4
    vS = 8
    vACC = (vS + UB + 3) // 4 * 4
    vT = vACC + 8
    vX = vT + 8
    vR = (vX + 8 + 3) // 4 * 4
    nv = vR + 4 * D
    assert 4 * D >= 2 * NW
    lds_ml = NW * 512
    lds_role = lds_ml + NW * 8
    lds = (lds_role + 4 + 255) // 256 * 256
    A(HEADER.rstrip('\n'))
    A('; Override launch geometry by editing the next line (default: block=256,')
    A(f'; @launch grid=({NWG},1,1) block=({NW*64},1,1) lds={lds}')
    A('.amdgcn_target "amdgcn-amd-amdhsa--gfx950"')
    A('.text')
    A('.globl standalone__softmax_full_bidir__decode_kernel')
    A('.p2align 8')
    A('.type standalone__softmax_full_bidir__decode_kernel,@function')
    A('standalone__softmax_full_bidir__decode_kernel:')
    A(f'    s_cmp_ge_u32 s2, {NWG}')
    A('    s_cbranch_scc1 L_done')
    A('    s_load_dwordx4 s[4:7], s[0:1], 0       ; q, k')
    A('    s_load_dwordx4 s[8:11], s[0:1], 16     ; v, out')
    A('    s_load_dwordx4 s[12:15], s[0:1], 32')
    if diag:
        A('    s_memrealtime s[90:91]')
    NX = UM // XSTEP + 1
    assert NX <= 8 and (NX - 1) * XSTEP == UM
    ptab = 0
    for hl, (a, b) in enumerate(pairs):
        ptab |= (2 * hl) << (4 * a)
        ptab |= (2 * hl + 1) << (4 * b)
    ctab = 0
    for x, c in enumerate(codes):
        assert c < NX
        ctab |= c << (4 * x)
    A('    s_and_b32 s16, s2, 7')
    A('    s_lshl_b32 s16, s16, 2')
    A(f'    s_lshr_b32 s16, 0x{ptab:08x}, s16')
    A('    s_and_b32 s18, s16, 1')
    A('    s_bfe_u32 s16, s16, 0x20001')
    A('    s_lshr_b32 s17, s2, 3')
    A('    s_lshl_b32 s17, s17, 2')
    A('    s_add_u32 s17, s17, s16             ; head')
    A('    v_lshrrev_b32 v2, 6, v0')
    A('    v_and_b32 v3, 63, v0                ; lane')
    A('    v_readfirstlane_b32 s19, v2')
    A(f'    v_and_b32 v{vT}, 15, v0')
    A(f'    v_lshlrev_b32 v{vT}, 4, v{vT}         ; (lane%16)*16')
    A('    s_lshl_b32 s20, s17, 20')
    A(f'    s_mul_i32 s21, s18, {NW*(US+UM)*1024}')
    A('    s_add_u32 s21, s20, s21')
    A(f'    s_mul_i32 s23, s19, {US*1024}')
    A('    s_add_u32 s21, s21, s23')
    A(f'    s_mul_i32 s23, s19, {UM*1024}')
    A(f'    s_add_u32 s23, s23, {NW*US*1024}')
    A('    s_add_u32 s23, s23, s20')
    A(f'    v_lshlrev_b32 v{vOFF}, 4, v3')
    A(f'    v_add_u32 v{vOF2}, s23, v{vOFF}')
    A(f'    v_add_u32 v{vOFF}, s21, v{vOFF}')
    A('    s_lshl_b32 s22, s17, 8')
    if rot:
        assert US % GU == 0
        G = US // GU
        A(f'    s_mul_i32 s36, s19, {rot[0]}')
        A(f'    s_mul_i32 s37, s17, {rot[1]}')
        A('    s_add_u32 s36, s36, s37')
        A(f'    s_mul_i32 s37, s18, {rot[2]}')
        A('    s_add_u32 s36, s36, s37')
        A(f'    s_mul_i32 s37, s36, {(1<<20)//G+1}')
        A('    s_lshr_b32 s37, s37, 20')
        A(f'    s_mul_i32 s37, s37, {G}')
        A('    s_sub_u32 s36, s36, s37')
        A(f'    s_mul_i32 s36, s36, {GU*1024}')
    A('    s_lshr_b32 s80, s17, 1')
    A('    s_lshl_b32 s80, s80, 2')
    A('    s_and_b32 s81, s17, 1')
    A('    s_lshl_b32 s81, s81, 4              ; shift')
    A('    s_getreg_b32 s86, hwreg(HW_REG_XCC_ID)')
    A('    s_and_b32 s86, s86, 7')
    A('    s_lshl_b32 s86, s86, 2')
    A(f'    s_lshr_b32 s86, 0x{ctab:08x}, s86')
    A('    s_and_b32 s86, s86, 7')
    A('    s_waitcnt lgkmcnt(0)')
    A('    s_mov_b32 s24, s6')
    A('    s_mov_b32 s25, s7')
    A('    s_mov_b32 s26, 0x8000000')
    A('    s_mov_b32 s27, 0x00020000           ; K srd s[24:27]')
    A('    s_mov_b32 s28, s8')
    A('    s_mov_b32 s29, s9')
    A('    s_mov_b32 s30, 0x8000000')
    A('    s_mov_b32 s31, 0x00020000           ; V srd s[28:31]')
    A('    s_mov_b32 s32, s4')
    A('    s_mov_b32 s33, s5')
    A('    s_mov_b32 s34, 0x8000')
    A('    s_mov_b32 s35, 0x00020000           ; Q srd s[32:35]')
    A('    s_mov_b32 s52, s12')
    A('    s_mov_b32 s53, s13')
    A('    s_mov_b32 s54, 256')
    A('    s_mov_b32 s55, 0x00020000')
    A('    s_cmp_lg_u32 s19, 0')
    A('    s_cbranch_scc1 L_norole')
    A('    s_lshl_b32 s82, s86, 9')
    A('    s_add_u32 s82, s82, 0x100')
    A('    s_lshl_b32 s82, s82, s81')
    A(f'    v_mov_b32 v{vX+6}, s82')
    A(f'    v_mov_b32 v{vX+7}, s80')
    A('    s_mov_b64 exec, 1')
    A(f'    buffer_atomic_add v{vX+6}, v{vX+7}, s[52:55], 0 offen sc0 sc1')
    A('    s_mov_b64 exec, -1')
    A('L_norole:')
    A(f'    buffer_load_dwordx4 v[{vQ}:{vQ+3}], v{vT}, s[32:35], s22 offen')
    seqS = [('K', vOFF, u) for u in range(US)] + [('V', vOFF, u) for u in range(US)]
    def seqX(x):
        return [('K', vOFF, u) for u in range(US)] + [('K', vOF2, u) for u in range(x)] + \
               [('V', vOFF, u) for u in range(US)] + [('V', vOF2, u) for u in range(x)]
    def issue(seq, i):
        kind, vo, u = seq[i]
        srd = 's[24:27]' if kind == 'K' else 's[28:31]'
        off = u * 1024
        r = vR + 4 * (i % D)
        if rot and vo == vOFF:
            g = u // GU
            sc = 40 + (g % 8)
            sp = 40 + ((g - 1) % 8)
            if u % GU == 0:
                if g == 0:
                    A(f'    s_mov_b32 s{sc}, s36')
                else:
                    A(f'    s_add_u32 s{sc}, s{sp}, {GU*1024}')
                    A(f'    s_cmp_ge_u32 s{sc}, {US*1024}')
                    A(f'    s_cselect_b32 s{sc}, 0, s{sc}')
            A(f'    buffer_load_dwordx4 v[{r}:{r+3}], v{vo}, {srd}, s{sc} offen offset:{(u%GU)*1024}{ntf}')
            return
        imm = off % 4096
        so = off - imm
        sreg = (64 if rot else 40) + (i % 8)
        if so == 0:
            A(f'    buffer_load_dwordx4 v[{r}:{r+3}], v{vo}, {srd}, 0 offen offset:{imm}{ntf}')
        else:
            A(f'    s_mov_b32 s{sreg}, {so}')
            A(f'    buffer_load_dwordx4 v[{r}:{r+3}], v{vo}, {srd}, s{sreg} offen offset:{imm}{ntf}')
    for i in range(D):
        issue(seqS, i)
    A('    s_mov_b32 s48, s10')
    A('    s_mov_b32 s49, s11')
    A('    s_mov_b32 s50, 0x8000')
    A('    s_mov_b32 s51, 0x00020000')
    A('    s_mov_b32 s56, s14')
    A('    s_mov_b32 s57, s15')
    A(f'    s_mov_b32 s58, {NWG*1024 if diag != 2 else 0x200000}')
    A('    s_mov_b32 s59, 0x00020000')
    A(f'    s_mov_b32 s60, 0x{f2u(C):08x}       ; scale*log2e')
    A('    s_mov_b32 s61, 0xffff0000')
    for j in range(8):
        A(f'    v_mov_b32 v{vACC+j}, 0')
    A(f'    v_mov_b32 v{vX+5}, {lds_role}')
    A('    s_cmp_lg_u32 s19, 0')
    A('    s_cbranch_scc1 L_rolebar')
    A(f'    s_waitcnt vmcnt({D+1})')
    A(f'    v_readfirstlane_b32 s83, v{vX+6}')
    A('    s_nop 3')
    A('    s_lshr_b32 s83, s83, s81')
    A('    s_lshr_b32 s83, s83, 8')
    A('    s_and_b32 s83, s83, 15')
    A('    s_lshr_b32 s87, s83, 1')
    A(f'    s_sub_u32 s87, {NX-1}, s87')
    A('    s_cmp_eq_u32 s83, 0')
    A('    s_cselect_b32 s87, s86, s87')
    A(f'    v_mov_b32 v{vX+6}, s87')
    A(f'    ds_write_b32 v{vX+5}, v{vX+6}')
    A('    s_waitcnt lgkmcnt(0)')
    A('L_rolebar:')
    A('    s_barrier')
    A(f'    ds_read_b32 v{vX+6}, v{vX+5}')
    state = {'pend': []}
    def dpp_flush(force=False):
        p = state['pend']
        if not p:
            return
        for rot in (8, 4, 2, 1):
            for u in p:
                A(f'    v_add_f32_dpp v{vS+u}, v{vS+u}, v{vS+u} row_ror:{rot} row_mask:0xf bank_mask:0xf')
            if len(p) < 3:
                A('    s_nop 1')
        state['pend'] = []
    def kstep(seq, i):
        NL = len(seq)
        A(f'    s_waitcnt vmcnt({min(D-1, NL-1-i)})')
        r = vR + 4 * (i % D)
        A(f'    v_dot2_f32_bf16 v{vS+i}, v{r}, v{vQ}, 0')
        for j in range(1, 4):
            A(f'    v_dot2_f32_bf16 v{vS+i}, v{r+j}, v{vQ+j}, v{vS+i}')
        if i + D < NL:
            issue(seq, i + D)
        if len(state['pend']) >= 4:
            dpp_flush()
        state['pend'].append(i)
    m = vX
    lsum = m + 2
    def tail(seq, i0, U):
        NL = len(seq)
        for i in range(i0, U):
            kstep(seq, i)
        A('    s_nop 3')
        dpp_flush()
        if diag == 2:
            A('    s_memrealtime s[88:89]')
        A(f'    v_max3_f32 v{m}, v{vS}, v{vS+1}, v{vS+2}')
        k = 3
        while k + 1 < U:
            A(f'    v_max3_f32 v{m}, v{m}, v{vS+k}, v{vS+k+1}')
            k += 2
        if k < U:
            A(f'    v_max_f32 v{m}, v{m}, v{vS+k}')
        A(f'    v_mov_b32 v{m+1}, v{m}')
        A('    s_nop 1')
        A(f'    v_permlane32_swap_b32 v{m}, v{m+1}')
        A('    s_nop 1')
        A(f'    v_max_f32 v{m}, v{m}, v{m+1}')
        A(f'    v_mov_b32 v{m+1}, v{m}')
        A('    s_nop 1')
        A(f'    v_permlane16_swap_b32 v{m}, v{m+1}')
        A('    s_nop 1')
        A(f'    v_max_f32 v{m}, v{m}, v{m+1}')
        A(f'    v_mul_f32 v{m+1}, s60, v{m}')
        for u in range(U):
            A(f'    v_fma_f32 v{vS+u}, v{vS+u}, s60, -v{m+1}')
        for u in range(U):
            A(f'    v_exp_f32 v{vS+u}, v{vS+u}')
        A('    s_nop 0')
        A(f'    v_add_f32 v{lsum}, v{vS}, v{vS+1}')
        A(f'    v_add_f32 v{lsum+1}, v{vS+2}, v{vS+3}')
        for u in range(4, U, 2):
            A(f'    v_add_f32 v{lsum}, v{lsum}, v{vS+u}')
            A(f'    v_add_f32 v{lsum+1}, v{lsum+1}, v{vS+u+1}')
        A(f'    v_add_f32 v{lsum}, v{lsum}, v{lsum+1}')
        for i in range(U, NL):
            u = i - U
            A(f'    s_waitcnt vmcnt({min(D-1, NL-1-i)})')
            r = vR + 4 * (i % D)
            for j in range(4):
                A(f'    v_lshlrev_b32 v{vT+2*j}, 16, v{r+j}')
                A(f'    v_and_b32 v{vT+2*j+1}, s61, v{r+j}')
            if i + D < NL:
                issue(seq, i + D)
            for j in range(8):
                A(f'    v_fmac_f32 v{vACC+j}, v{vS+u}, v{vT+j}')
    i0 = US - D
    for i in range(i0):
        kstep(seqS, i)
    A('    s_waitcnt lgkmcnt(0)')
    A(f'    v_readfirstlane_b32 s87, v{vX+6}')
    A('    s_nop 3')
    for c in range(1, NX):
        A(f'    s_cmp_eq_u32 s87, {c}')
        A(f'    s_cbranch_scc1 L_x{c}')
    saved = list(state['pend'])
    for c in range(NX):
        x = c * XSTEP
        A(f'L_x{c}:')
        state['pend'] = list(saved)
        if 0 < x < UM:
            A(f'    s_mul_i32 s37, s18, {(UM-x)*1024}')
            A(f'    v_add_u32 v{vOF2}, s37, v{vOF2}')
        tail(seqX(x), i0, US + x)
        if c < NX - 1:
            A('    s_branch L_join')
    A('L_join:')
    A(f'    v_mov_b32 v{lsum+1}, v{lsum}')
    A('    s_nop 1')
    for j in range(4):
        A(f'    v_permlane32_swap_b32 v{vACC+j}, v{vACC+4+j}')
    A(f'    v_permlane32_swap_b32 v{lsum}, v{lsum+1}')
    A('    s_nop 1')
    for j in range(4):
        A(f'    v_add_f32 v{vACC+j}, v{vACC+j}, v{vACC+4+j}')
    A(f'    v_add_f32 v{lsum}, v{lsum}, v{lsum+1}')
    A(f'    v_mov_b32 v{lsum+1}, v{lsum}')
    A('    s_nop 1')
    A(f'    v_permlane16_swap_b32 v{vACC}, v{vACC+2}')
    A(f'    v_permlane16_swap_b32 v{vACC+1}, v{vACC+3}')
    A(f'    v_permlane16_swap_b32 v{lsum}, v{lsum+1}')
    A('    s_nop 1')
    A(f'    v_add_f32 v{vACC}, v{vACC}, v{vACC+2}')
    A(f'    v_add_f32 v{vACC+1}, v{vACC+1}, v{vACC+3}')
    A(f'    v_add_f32 v{m+1}, v{lsum}, v{lsum+1}   ; wave l  (v{m}=m, v{m+1}=l)')
    t = vT
    A(f'    v_and_b32 v{t}, 15, v3')
    A(f'    v_lshlrev_b32 v{t}, 5, v{t}          ; c*32 bytes')
    A(f'    v_lshrrev_b32 v{t+1}, 4, v3')
    A(f'    v_lshl_add_u32 v{t}, v{t+1}, 3, v{t} ; + r*8')
    A('    s_lshl_b32 s62, s19, 9')
    A(f'    v_add_u32 v{t}, s62, v{t}')
    A(f'    ds_write_b64 v{t}, v[{vACC}:{vACC+1}]')
    A('    s_lshl_b32 s62, s19, 3')
    A(f'    s_add_u32 s62, s62, {lds_ml}')
    A(f'    v_mov_b32 v{t+2}, s62')
    A(f'    ds_write_b64 v{t+2}, v[{m}:{m+1}]')
    A('    s_waitcnt lgkmcnt(0)')
    A('    s_barrier')
    A('    s_cmp_lg_u32 s19, 0')
    A('    s_cbranch_scc1 L_done')
    if diag == 2:
        A('    s_memrealtime s[92:93]')
        A('    s_getreg_b32 s94, hwreg(HW_REG_XCC_ID)')
        A('    s_waitcnt lgkmcnt(0)')
        A('    s_lshl_b32 s93, s2, 4')
        A('    s_add_u32 s93, s93, 0x100000')
        A(f'    v_mov_b32 v{vR+40}, s90')
        A(f'    v_mov_b32 v{vR+41}, s92')
        A(f'    v_mov_b32 v{vR+42}, s94')
        A(f'    v_mov_b32 v{vR+43}, s88')
        A(f'    v_mov_b32 v{vT}, 0')
        A('    s_mov_b64 exec, 1')
        A(f'    buffer_store_dwordx4 v[{vR+40}:{vR+43}], v{vT}, s[56:59], s93 offen')
        A('    s_mov_b64 exec, -1')
    A(f'    v_and_b32 v{t}, {NW-1}, v3')
    A(f'    v_lshlrev_b32 v{t}, 3, v{t}')
    A(f'    ds_read_b64 v[{m}:{m+1}], v{t} offset:{lds_ml}')
    A(f'    v_lshlrev_b32 v{t+1}, 3, v3           ; lane*8')
    for w in range(NW):
        A(f'    ds_read_b64 v[{vR+2*w}:{vR+2*w+1}], v{t+1} offset:{w*512}')
    A(f'    s_waitcnt lgkmcnt({min(NW,15)})')
    M = m + 2
    A(f'    v_mov_b32 v{M}, v{m}')
    A('    s_nop 1')
    rots = [r for r in (8, 4, 2, 1) if r < NW]
    for rot in rots:
        A(f'    v_max_f32_dpp v{M}, v{M}, v{M} row_ror:{rot} row_mask:0xf bank_mask:0xf')
        A('    s_nop 1')
    F = m + 3
    A(f'    v_sub_f32 v{F}, v{m}, v{M}')
    A(f'    v_mul_f32 v{F}, s60, v{F}')
    A(f'    v_exp_f32 v{F}, v{F}')
    A('    s_nop 0')
    Lr = m + 4
    A(f'    v_mul_f32 v{Lr}, v{m+1}, v{F}')
    A('    s_nop 1')
    for rot in rots:
        A(f'    v_add_f32_dpp v{Lr}, v{Lr}, v{Lr} row_ror:{rot} row_mask:0xf bank_mask:0xf')
        A('    s_nop 1')
    for w in range(NW):
        A(f'    v_readlane_b32 s{64+w}, v{F}, {w}')
    A('    s_waitcnt lgkmcnt(0)')
    o = vACC
    assert vACC % 4 == 0
    A(f'    v_mul_f32 v{o}, s64, v{vR}')
    A(f'    v_mul_f32 v{o+1}, s64, v{vR+1}')
    for w in range(1, NW):
        A(f'    v_fmac_f32 v{o}, s{64+w}, v{vR+2*w}')
        A(f'    v_fmac_f32 v{o+1}, s{64+w}, v{vR+2*w+1}')
    A(f'    v_mov_b32 v{o+2}, v{M}')
    A(f'    v_mov_b32 v{o+3}, v{Lr}')
    A(f'    s_mul_i32 s62, s17, {NSPLIT}')
    A('    s_add_u32 s63, s62, s18')
    A('    s_lshl_b32 s63, s63, 10')
    A('    s_lshl_b32 s62, s62, 10')
    A(f'    v_lshlrev_b32 v{t}, 4, v3             ; lane*16')
    A(f'    buffer_store_dwordx4 v[{o}:{o+3}], v{t}, s[56:59], s63 offen sc0 sc1')
    A('    s_waitcnt vmcnt(0)')
    A('    s_lshl_b32 s82, 1, s81')
    A(f'    v_mov_b32 v{t+2}, s82')
    A(f'    v_mov_b32 v{t+3}, s80')
    A('    s_mov_b64 exec, 1')
    A(f'    buffer_atomic_add v{t+2}, v{t+3}, s[52:55], 0 offen sc0 sc1')
    A('    s_mov_b64 exec, -1')
    A('    s_waitcnt vmcnt(0)')
    A(f'    v_readfirstlane_b32 s83, v{t+2}')
    A('    s_nop 3')
    A('    s_lshr_b32 s83, s83, s81')
    A('    s_and_b32 s83, s83, 0xff')
    A(f'    s_cmp_lg_u32 s83, {NSPLIT-1}')
    A('    s_cbranch_scc1 L_done')
    for sidx in range(NSPLIT):
        A(f'    buffer_load_dwordx4 v[{vR+4*sidx}:{vR+4*sidx+3}], v{t}, s[56:59], s62 offen offset:{sidx*1024} sc0 sc1')
    A('    s_waitcnt vmcnt(0)')
    A(f'    v_max_f32 v{M}, v{vR+2}, v{vR+6}')
    for sidx in range(NSPLIT):
        A(f'    v_sub_f32 v{vR+4*sidx+2}, v{vR+4*sidx+2}, v{M}')
        A(f'    v_mul_f32 v{vR+4*sidx+2}, s60, v{vR+4*sidx+2}')
        A(f'    v_exp_f32 v{vR+4*sidx+2}, v{vR+4*sidx+2}')
    A('    s_nop 0')
    A(f'    v_mul_f32 v{o}, v{vR}, v{vR+2}')
    A(f'    v_mul_f32 v{o+1}, v{vR+1}, v{vR+2}')
    A(f'    v_mul_f32 v{o+2}, v{vR+3}, v{vR+2}')
    for sidx in range(1, NSPLIT):
        b = vR + 4 * sidx
        A(f'    v_fmac_f32 v{o}, v{b}, v{b+2}')
        A(f'    v_fmac_f32 v{o+1}, v{b+1}, v{b+2}')
        A(f'    v_fmac_f32 v{o+2}, v{b+3}, v{b+2}')
    A(f'    v_rcp_f32 v{o+2}, v{o+2}')
    A('    s_nop 0')
    A(f'    v_mul_f32 v{o}, v{o}, v{o+2}')
    A(f'    v_mul_f32 v{o+1}, v{o+1}, v{o+2}')
    A(f'    v_cvt_pk_bf16_f32 v{o}, v{o}, v{o+1}')
    A(f'    v_lshlrev_b32 v{t+1}, 2, v3')
    A(f'    buffer_store_dword v{o}, v{t+1}, s[48:51], s22 offen')
    A('L_done:')
    A('    s_endpgm')
    A('.section .rodata,"a"')
    A('.p2align 6')
    A('.amdhsa_kernel standalone__softmax_full_bidir__decode_kernel')
    nva = (nv + 7) // 8 * 8
    A(f'  .amdhsa_next_free_vgpr {nva}')
    A('  .amdhsa_next_free_sgpr 96')
    A(f'  .amdhsa_accum_offset {nva}')
    A('  .amdhsa_group_segment_fixed_size 0')
    A('  .amdhsa_kernarg_size 48')
    A('  .amdhsa_user_sgpr_count 2')
    A('  .amdhsa_user_sgpr_kernarg_segment_ptr 1')
    A('  .amdhsa_system_sgpr_workgroup_id_x 1')
    A('.end_amdhsa_kernel')
    return '\n'.join(L) + '\n'

if __name__ == '__main__':
    import argparse
    ap = argparse.ArgumentParser()
    ap.add_argument('-o', default='r.s')
    ap.add_argument('--nw', type=int, default=8)
    ap.add_argument('--d', type=int, default=16)
    ap.add_argument('--um', type=int, default=12)
    ap.add_argument('--diag', type=int, default=0)
    ap.add_argument('--pol', type=int, default=0)
    ap.add_argument('--rot', type=str, default='')
    ap.add_argument('--gu', type=int, default=4)
    ap.add_argument('--xstep', type=int, default=4)
    ap.add_argument('--pairs', type=str, default='05,63,27,41')
    ap.add_argument('--codes', type=str, default='31202031')
    a = ap.parse_args()
    open(a.o, 'w').write(gen(a.nw, a.d, a.um, True, a.diag, a.pol, tuple(int(x) for x in a.rot.split(',')) if a.rot else None, a.gu, a.xstep, tuple((int(p[0]),int(p[1])) for p in a.pairs.split(',')), tuple(int(c) for c in a.codes)))
```

```python
import sys, math, struct

def f2u(x):
    return struct.unpack('<I', struct.pack('<f', x))[0]

HEADER = open('standalone__softmax_full_bidir__decode.s.ref').read().split('; Override launch')[0]

def gen(NW=8, D=16, UM=16, nt=True, diag=0, pol=0, rot=None, GU=4):
    NH = 128
    NSPLIT = 2
    UT = 1024 // NW
    US = (UT - UM) // 2
    assert 2 * US + UM == UT
    UB = US + UM
    NWG = NH * NSPLIT
    C = (128 ** -0.5) * math.log2(math.e)
    L = []
    A = L.append
    ntf = ' nt' if nt else ''
    vOFF = 1
    vOF2 = 2
    vQ = 4
    vS = 8
    vACC = (vS + UB + 3) // 4 * 4
    vT = vACC + 8
    vX = vT + 8
    vP = (vX + 12 + 3) // 4 * 4
    vR = vP + 4
    nv = vR + 4 * D
    assert 4 * D >= 2 * NW
    lds_ml = NW * 512
    lds_role = lds_ml + NW * 8
    lds = (lds_role + 4 + 255) // 256 * 256
    A(HEADER.rstrip('\n'))
    A('; Override launch geometry by editing the next line (default: block=256,')
    A(f'; @launch grid=({NWG},1,1) block=({NW*64},1,1) lds={lds}')
    A('.amdgcn_target "amdgcn-amd-amdhsa--gfx950"')
    A('.text')
    A('.globl standalone__softmax_full_bidir__decode_kernel')
    A('.p2align 8')
    A('.type standalone__softmax_full_bidir__decode_kernel,@function')
    A('standalone__softmax_full_bidir__decode_kernel:')
    A(f'    s_cmp_ge_u32 s2, {NWG}')
    A('    s_cbranch_scc1 L_done')
    A('    s_load_dwordx4 s[4:7], s[0:1], 0       ; q, k')
    A('    s_load_dwordx4 s[8:11], s[0:1], 16     ; v, out')
    A('    s_load_dwordx4 s[12:15], s[0:1], 32')
    if diag:
        A('    s_memrealtime s[90:91]')
    A('    s_and_b32 s18, s2, 1')
    A('    s_lshr_b32 s17, s2, 1               ; head')
    A('    v_lshrrev_b32 v2, 6, v0')
    A('    v_and_b32 v3, 63, v0                ; lane')
    A('    v_readfirstlane_b32 s19, v2')
    A(f'    v_and_b32 v{vT}, 15, v0')
    A(f'    v_lshlrev_b32 v{vT}, 4, v{vT}         ; (lane%16)*16')
    A('    s_lshl_b32 s20, s17, 20')
    A(f'    s_mul_i32 s21, s18, {NW*(US+UM)*1024}')
    A('    s_add_u32 s21, s20, s21')
    A(f'    s_mul_i32 s23, s19, {US*1024}')
    A('    s_add_u32 s21, s21, s23')
    A(f'    s_mul_i32 s23, s19, {UM*1024}')
    A(f'    s_add_u32 s23, s23, {NW*US*1024}')
    A('    s_add_u32 s23, s23, s20')
    A(f'    v_lshlrev_b32 v{vOFF}, 4, v3')
    A(f'    v_add_u32 v{vOF2}, s23, v{vOFF}')
    A(f'    v_add_u32 v{vOFF}, s21, v{vOFF}')
    A('    s_lshl_b32 s22, s17, 8')
    if rot:
        assert US % GU == 0
        G = US // GU
        A(f'    s_mul_i32 s36, s19, {rot[0]}')
        A(f'    s_mul_i32 s37, s17, {rot[1]}')
        A('    s_add_u32 s36, s36, s37')
        A(f'    s_mul_i32 s37, s18, {rot[2]}')
        A('    s_add_u32 s36, s36, s37')
        A(f'    s_mul_i32 s37, s36, {(1<<20)//G+1}')
        A('    s_lshr_b32 s37, s37, 20')
        A(f'    s_mul_i32 s37, s37, {G}')
        A('    s_sub_u32 s36, s36, s37')
        A(f'    s_mul_i32 s36, s36, {GU*1024}')
    A('    s_lshr_b32 s80, s17, 1')
    A('    s_lshl_b32 s80, s80, 2')
    A('    s_and_b32 s81, s17, 1')
    A('    s_lshl_b32 s81, s81, 4              ; shift')
    A('    s_getreg_b32 s86, hwreg(HW_REG_XCC_ID)')
    A('    s_and_b32 s86, s86, 1')
    if pol == 0:
        A('    s_xor_b32 s86, s86, 1')
    A('    s_waitcnt lgkmcnt(0)')
    A('    s_mov_b32 s24, s6')
    A('    s_mov_b32 s25, s7')
    A('    s_mov_b32 s26, 0x8000000')
    A('    s_mov_b32 s27, 0x00020000           ; K srd s[24:27]')
    A('    s_mov_b32 s28, s8')
    A('    s_mov_b32 s29, s9')
    A('    s_mov_b32 s30, 0x8000000')
    A('    s_mov_b32 s31, 0x00020000           ; V srd s[28:31]')
    A('    s_mov_b32 s32, s4')
    A('    s_mov_b32 s33, s5')
    A('    s_mov_b32 s34, 0x8000')
    A('    s_mov_b32 s35, 0x00020000           ; Q srd s[32:35]')
    A('    s_mov_b32 s52, s12')
    A('    s_mov_b32 s53, s13')
    A('    s_mov_b32 s54, 256')
    A('    s_mov_b32 s55, 0x00020000')
    A('    s_mov_b32 s56, s14')
    A('    s_mov_b32 s57, s15')
    A(f'    s_mov_b32 s58, {NWG*1024 if diag != 2 else 0x200000}')
    A('    s_mov_b32 s59, 0x00020000')
    A('    s_lshl_b32 s62, s17, 11')
    A('    s_lshl_b32 s63, s18, 10')
    A('    s_xor_b32 s85, s63, 0x400')
    A('    s_add_u32 s63, s63, s62')
    A('    s_add_u32 s85, s85, s62')
    for j in range(8):
        A(f'    v_mov_b32 v{vACC+j}, 0')
    A(f'    v_mov_b32 v{vX+5}, {lds_role}')
    A(f'    v_lshlrev_b32 v{vX+9}, 4, v3          ; lane*16')
    A('    s_cmp_lg_u32 s19, 0')
    A('    s_cbranch_scc1 L_norole')
    A(f'    buffer_store_dwordx4 v[{vACC}:{vACC+3}], v{vX+9}, s[56:59], s63 offen sc0 sc1')
    A(f'    v_mov_b32 v{vX+8}, 0xff')
    A(f'    ds_write_b32 v{vX+5}, v{vX+8}')
    A('    s_lshl_b32 s84, s86, 1')
    A('    s_add_u32 s84, s84, 1')
    A('    s_lshl_b32 s82, s84, 8')
    A('    s_lshl_b32 s82, s82, s81')
    A(f'    v_mov_b32 v{vX+6}, s82')
    A(f'    v_mov_b32 v{vX+7}, s80')
    A('    s_waitcnt lgkmcnt(0)')
    A('    s_barrier')
    A('    s_waitcnt vmcnt(0)')
    A('    s_mov_b64 exec, 1')
    A(f'    buffer_atomic_add v{vX+6}, v{vX+7}, s[52:55], 0 offen sc0 sc1')
    A('    s_mov_b64 exec, -1')
    A('L_norole:')
    A(f'    buffer_load_dwordx4 v[{vQ}:{vQ+3}], v{vT}, s[32:35], s22 offen')
    seqS = [('K', vOFF, u) for u in range(US)] + [('V', vOFF, u) for u in range(US)]
    seqB = [('K', vOFF, u) for u in range(US)] + [('K', vOF2, u) for u in range(UM)] + \
           [('V', vOFF, u) for u in range(US)] + [('V', vOF2, u) for u in range(UM)]
    def issue(seq, i):
        kind, vo, u = seq[i]
        srd = 's[24:27]' if kind == 'K' else 's[28:31]'
        off = u * 1024
        r = vR + 4 * (i % D)
        if rot and vo == vOFF:
            g = u // GU
            sc = 40 + (g % 8)
            sp = 40 + ((g - 1) % 8)
            if u % GU == 0:
                if g == 0:
                    A(f'    s_mov_b32 s{sc}, s36')
                else:
                    A(f'    s_add_u32 s{sc}, s{sp}, {GU*1024}')
                    A(f'    s_cmp_ge_u32 s{sc}, {US*1024}')
                    A(f'    s_cselect_b32 s{sc}, 0, s{sc}')
            A(f'    buffer_load_dwordx4 v[{r}:{r+3}], v{vo}, {srd}, s{sc} offen offset:{(u%GU)*1024}{ntf}')
            return
        imm = off % 4096
        so = off - imm
        sreg = (64 if rot else 40) + (i % 8)
        if so == 0:
            A(f'    buffer_load_dwordx4 v[{r}:{r+3}], v{vo}, {srd}, 0 offen offset:{imm}{ntf}')
        else:
            A(f'    s_mov_b32 s{sreg}, {so}')
            A(f'    buffer_load_dwordx4 v[{r}:{r+3}], v{vo}, {srd}, s{sreg} offen offset:{imm}{ntf}')
    for i in range(D):
        issue(seqS, i)
    A('    s_mov_b32 s48, s10')
    A('    s_mov_b32 s49, s11')
    A('    s_mov_b32 s50, 0x8000')
    A('    s_mov_b32 s51, 0x00020000')
    A(f'    s_mov_b32 s60, 0x{f2u(C):08x}       ; scale*log2e')
    A('    s_mov_b32 s61, 0xffff0000')
    A('    s_cmp_eq_u32 s19, 0')
    A('    s_cbranch_scc1 L_nobar1')
    A('    s_barrier')
    A('L_nobar1:')
    def w0_atomic():
        A('    s_cmp_lg_u32 s19, 0')
        A('    s_cbranch_scc1 L_w0a')
        A('    s_mov_b64 exec, 1')
        A(f'    buffer_atomic_add v{vX+6}, v{vX+7}, s[52:55], 0 offen sc0 sc1')
        A('    s_mov_b64 exec, -1')
        A('L_w0a:')
    def w0_resolve():
        A('    s_cmp_lg_u32 s19, 0')
        A('    s_cbranch_scc1 L_w0b')
        A(f'    v_readfirstlane_b32 s83, v{vX+6}')
        A('    s_nop 3')
        A('    s_lshr_b32 s83, s83, s81')
        A('    s_lshr_b32 s83, s83, 8')
        A('    s_and_b32 s83, s83, 3')
        A('    s_lshr_b32 s87, s83, 1')
        A('    s_xor_b32 s87, s87, 1')
        A('    s_cmp_eq_u32 s83, 0')
        A('    s_cselect_b32 s87, s86, s87')
        A(f'    v_mov_b32 v{vX+6}, s87')
        A(f'    ds_write_b32 v{vX+5}, v{vX+6}')
        A('L_w0b:')
    def w0_reread():
        A('    s_cmp_lg_u32 s19, 0')
        A('    s_cbranch_scc1 L_w0c')
        A(f'    buffer_load_dword v{vX+8}, v{vX+7}, s[52:55], 0 offen sc0 sc1')
        A('L_w0c:')
    state = {'pend': []}
    def dpp_flush(force=False):
        p = state['pend']
        if not p:
            return
        for rot in (8, 4, 2, 1):
            for u in p:
                A(f'    v_add_f32_dpp v{vS+u}, v{vS+u}, v{vS+u} row_ror:{rot} row_mask:0xf bank_mask:0xf')
            if len(p) < 3:
                A('    s_nop 1')
        state['pend'] = []
    def kstep(seq, i):
        NL = len(seq)
        A(f'    s_waitcnt vmcnt({min(D-1, NL-1-i)})')
        r = vR + 4 * (i % D)
        A(f'    v_dot2_f32_bf16 v{vS+i}, v{r}, v{vQ}, 0')
        for j in range(1, 4):
            A(f'    v_dot2_f32_bf16 v{vS+i}, v{r+j}, v{vQ+j}, v{vS+i}')
        if i + D < NL:
            issue(seq, i + D)
        if len(state['pend']) >= 4:
            dpp_flush()
        state['pend'].append(i)
    m = vX
    lsum = m + 2
    def tail(seq, i0, U):
        NL = len(seq)
        for i in range(i0, U):
            kstep(seq, i)
        A('    s_nop 3')
        dpp_flush()
        if diag == 2:
            A('    s_memrealtime s[88:89]')
        A(f'    v_max3_f32 v{m}, v{vS}, v{vS+1}, v{vS+2}')
        k = 3
        while k + 1 < U:
            A(f'    v_max3_f32 v{m}, v{m}, v{vS+k}, v{vS+k+1}')
            k += 2
        if k < U:
            A(f'    v_max_f32 v{m}, v{m}, v{vS+k}')
        A(f'    v_mov_b32 v{m+1}, v{m}')
        A('    s_nop 1')
        A(f'    v_permlane32_swap_b32 v{m}, v{m+1}')
        A('    s_nop 1')
        A(f'    v_max_f32 v{m}, v{m}, v{m+1}')
        A(f'    v_mov_b32 v{m+1}, v{m}')
        A('    s_nop 1')
        A(f'    v_permlane16_swap_b32 v{m}, v{m+1}')
        A('    s_nop 1')
        A(f'    v_max_f32 v{m}, v{m}, v{m+1}')
        A(f'    v_mul_f32 v{m+1}, s60, v{m}')
        for u in range(U):
            A(f'    v_fma_f32 v{vS+u}, v{vS+u}, s60, -v{m+1}')
        for u in range(U):
            A(f'    v_exp_f32 v{vS+u}, v{vS+u}')
        A('    s_nop 0')
        A(f'    v_add_f32 v{lsum}, v{vS}, v{vS+1}')
        A(f'    v_add_f32 v{lsum+1}, v{vS+2}, v{vS+3}')
        for u in range(4, U, 2):
            A(f'    v_add_f32 v{lsum}, v{lsum}, v{vS+u}')
            A(f'    v_add_f32 v{lsum+1}, v{lsum+1}, v{vS+u+1}')
        A(f'    v_add_f32 v{lsum}, v{lsum}, v{lsum+1}')
        for i in range(U, NL):
            u = i - U
            A(f'    s_waitcnt vmcnt({min(D-1, NL-1-i)})')
            r = vR + 4 * (i % D)
            for j in range(4):
                A(f'    v_lshlrev_b32 v{vT+2*j}, 16, v{r+j}')
                A(f'    v_and_b32 v{vT+2*j+1}, s61, v{r+j}')
            if i + D < NL:
                issue(seq, i + D)
            for j in range(8):
                A(f'    v_fmac_f32 v{vACC+j}, v{vS+u}, v{vT+j}')
    i0 = US - D
    assert i0 > D + 6
    for i in range(i0):
        kstep(seqS, i)
        if i == 1:
            w0_resolve()
        if i == i0 - 1:
            w0_reread()
    A('L_rspin:')
    A(f'    ds_read_b32 v{vX+6}, v{vX+5}')
    A('    s_waitcnt lgkmcnt(0)')
    A(f'    v_readfirstlane_b32 s87, v{vX+6}')
    A('    s_nop 3')
    A('    s_cmp_eq_u32 s87, 0xff')
    A('    s_cbranch_scc1 L_rspin')
    if UM:
        A('    s_cmp_lg_u32 s87, 0')
        A('    s_cbranch_scc1 L_big')
    saved = list(state['pend'])
    tail(seqS, i0, US)
    if UM:
        A('    s_branch L_join')
        A('L_big:')
        state['pend'] = saved
        tail(seqB, i0, UB)
    A('L_join:')
    A(f'    v_mov_b32 v{lsum+1}, v{lsum}')
    A('    s_nop 1')
    for j in range(4):
        A(f'    v_permlane32_swap_b32 v{vACC+j}, v{vACC+4+j}')
    A(f'    v_permlane32_swap_b32 v{lsum}, v{lsum+1}')
    A('    s_nop 1')
    for j in range(4):
        A(f'    v_add_f32 v{vACC+j}, v{vACC+j}, v{vACC+4+j}')
    A(f'    v_add_f32 v{lsum}, v{lsum}, v{lsum+1}')
    A(f'    v_mov_b32 v{lsum+1}, v{lsum}')
    A('    s_nop 1')
    A(f'    v_permlane16_swap_b32 v{vACC}, v{vACC+2}')
    A(f'    v_permlane16_swap_b32 v{vACC+1}, v{vACC+3}')
    A(f'    v_permlane16_swap_b32 v{lsum}, v{lsum+1}')
    A('    s_nop 1')
    A(f'    v_add_f32 v{vACC}, v{vACC}, v{vACC+2}')
    A(f'    v_add_f32 v{vACC+1}, v{vACC+1}, v{vACC+3}')
    A(f'    v_add_f32 v{m+1}, v{lsum}, v{lsum+1}   ; wave l  (v{m}=m, v{m+1}=l)')
    t = vT
    A(f'    v_and_b32 v{t}, 15, v3')
    A(f'    v_lshlrev_b32 v{t}, 5, v{t}          ; c*32 bytes')
    A(f'    v_lshrrev_b32 v{t+1}, 4, v3')
    A(f'    v_lshl_add_u32 v{t}, v{t+1}, 3, v{t} ; + r*8')
    A('    s_lshl_b32 s62, s19, 9')
    A(f'    v_add_u32 v{t}, s62, v{t}')
    A(f'    ds_write_b64 v{t}, v[{vACC}:{vACC+1}]')
    A('    s_lshl_b32 s62, s19, 3')
    A(f'    s_add_u32 s62, s62, {lds_ml}')
    A(f'    v_mov_b32 v{t+2}, s62')
    A(f'    ds_write_b64 v{t+2}, v[{m}:{m+1}]')
    A('    s_waitcnt lgkmcnt(0)')
    A('    s_barrier')
    A('    s_cmp_lg_u32 s19, 0')
    A('    s_cbranch_scc1 L_done')
    if diag == 2:
        A('    s_memrealtime s[92:93]')
        A('    s_getreg_b32 s94, hwreg(HW_REG_XCC_ID)')
        A('    s_waitcnt lgkmcnt(0)')
        A('    s_lshl_b32 s93, s2, 4')
        A('    s_add_u32 s93, s93, 0x100000')
        A(f'    v_mov_b32 v{vR+40}, s90')
        A(f'    v_mov_b32 v{vR+41}, s92')
        A(f'    v_mov_b32 v{vR+42}, s94')
        A(f'    v_mov_b32 v{vR+43}, s88')
        A(f'    v_mov_b32 v{vT}, 0')
        A('    s_mov_b64 exec, 1')
        A(f'    buffer_store_dwordx4 v[{vR+40}:{vR+43}], v{vT}, s[56:59], s93 offen')
        A('    s_mov_b64 exec, -1')
    A(f'    buffer_load_dwordx4 v[{vP}:{vP+3}], v{vX+9}, s[56:59], s85 offen sc0 sc1')
    A(f'    v_readfirstlane_b32 s83, v{vX+8}')
    A(f'    v_and_b32 v{t}, {NW-1}, v3')
    A(f'    v_lshlrev_b32 v{t}, 3, v{t}')
    A(f'    ds_read_b64 v[{m}:{m+1}], v{t} offset:{lds_ml}')
    A(f'    v_lshlrev_b32 v{t+1}, 3, v3           ; lane*8')
    for w in range(NW):
        A(f'    ds_read_b64 v[{vR+2*w}:{vR+2*w+1}], v{t+1} offset:{w*512}')
    A(f'    s_waitcnt lgkmcnt({min(NW,15)})')
    M = m + 2
    A(f'    v_mov_b32 v{M}, v{m}')
    A('    s_nop 1')
    rots = [r for r in (8, 4, 2, 1) if r < NW]
    for rot in rots:
        A(f'    v_max_f32_dpp v{M}, v{M}, v{M} row_ror:{rot} row_mask:0xf bank_mask:0xf')
        A('    s_nop 1')
    F = m + 3
    A(f'    v_sub_f32 v{F}, v{m}, v{M}')
    A(f'    v_mul_f32 v{F}, s60, v{F}')
    A(f'    v_exp_f32 v{F}, v{F}')
    A('    s_nop 0')
    Lr = m + 4
    A(f'    v_mul_f32 v{Lr}, v{m+1}, v{F}')
    A('    s_nop 1')
    for rot in rots:
        A(f'    v_add_f32_dpp v{Lr}, v{Lr}, v{Lr} row_ror:{rot} row_mask:0xf bank_mask:0xf')
        A('    s_nop 1')
    for w in range(NW):
        A(f'    v_readlane_b32 s{64+w}, v{F}, {w}')
    A('    s_waitcnt lgkmcnt(0)')
    o = vACC
    assert vACC % 4 == 0
    A(f'    v_mul_f32 v{o}, s64, v{vR}')
    A(f'    v_mul_f32 v{o+1}, s64, v{vR+1}')
    for w in range(1, NW):
        A(f'    v_fmac_f32 v{o}, s{64+w}, v{vR+2*w}')
        A(f'    v_fmac_f32 v{o+1}, s{64+w}, v{vR+2*w+1}')
    A(f'    v_mov_b32 v{o+2}, v{M}')
    A(f'    v_mov_b32 v{o+3}, v{Lr}')
    A(f'    buffer_store_dwordx4 v[{o}:{o+3}], v{vX+9}, s[56:59], s63 offen sc0 sc1')
    A('    s_lshr_b32 s83, s83, s81')
    A('    s_bfe_u32 s83, s83, 0x30008')
    A('    s_cmp_eq_u32 s83, s84')
    A('    s_cbranch_scc1 L_slowT')
    A('    s_waitcnt vmcnt(1)')
    A(f'    v_cmp_gt_f32 vcc, v{vP+3}, 0')
    A('    s_nop 3')
    A('    s_cmp_eq_u64 vcc, -1')
    A('    s_cbranch_scc1 L_final')
    A('    s_waitcnt vmcnt(0)')
    A('    s_branch L_look2')
    A('L_slowT:')
    A('    s_waitcnt vmcnt(0)')
    A(f'    buffer_load_dword v{vX+8}, v{vX+7}, s[52:55], 0 offen sc0 sc1')
    A('    s_waitcnt vmcnt(0)')
    A(f'    v_readfirstlane_b32 s83, v{vX+8}')
    A('    s_nop 3')
    A('    s_lshr_b32 s83, s83, s81')
    A('    s_bfe_u32 s83, s83, 0x30008')
    A('    s_cmp_eq_u32 s83, s84')
    A('    s_cbranch_scc1 L_done')
    A('L_look2:')
    A(f'    buffer_load_dwordx4 v[{vP}:{vP+3}], v{vX+9}, s[56:59], s85 offen sc0 sc1')
    A('    s_waitcnt vmcnt(0)')
    A(f'    v_cmp_gt_f32 vcc, v{vP+3}, 0')
    A('    s_nop 3')
    A('    s_cmp_eq_u64 vcc, -1')
    A('    s_cbranch_scc0 L_done')
    A('L_final:')
    A('    s_cmp_eq_u32 s18, 0')
    A('    s_cselect_b64 vcc, -1, 0')
    A('    s_nop 3')
    for j in range(4):
        A(f'    v_cndmask_b32 v{vR+j}, v{vP+j}, v{o+j}, vcc')
        A(f'    v_cndmask_b32 v{vR+4+j}, v{o+j}, v{vP+j}, vcc')
    A(f'    v_max_f32 v{M}, v{vR+2}, v{vR+6}')
    for sidx in range(NSPLIT):
        A(f'    v_sub_f32 v{vR+4*sidx+2}, v{vR+4*sidx+2}, v{M}')
        A(f'    v_mul_f32 v{vR+4*sidx+2}, s60, v{vR+4*sidx+2}')
        A(f'    v_exp_f32 v{vR+4*sidx+2}, v{vR+4*sidx+2}')
    A('    s_nop 0')
    o = vT + 4
    A(f'    v_mul_f32 v{o}, v{vR}, v{vR+2}')
    A(f'    v_mul_f32 v{o+1}, v{vR+1}, v{vR+2}')
    A(f'    v_mul_f32 v{o+2}, v{vR+3}, v{vR+2}')
    for sidx in range(1, NSPLIT):
        b = vR + 4 * sidx
        A(f'    v_fmac_f32 v{o}, v{b}, v{b+2}')
        A(f'    v_fmac_f32 v{o+1}, v{b+1}, v{b+2}')
        A(f'    v_fmac_f32 v{o+2}, v{b+3}, v{b+2}')
    A(f'    v_rcp_f32 v{o+2}, v{o+2}')
    A('    s_nop 0')
    A(f'    v_mul_f32 v{o}, v{o}, v{o+2}')
    A(f'    v_mul_f32 v{o+1}, v{o+1}, v{o+2}')
    A(f'    v_cvt_pk_bf16_f32 v{o}, v{o}, v{o+1}')
    A(f'    v_lshlrev_b32 v{t+1}, 2, v3')
    A(f'    buffer_store_dword v{o}, v{t+1}, s[48:51], s22 offen')
    A('L_done:')
    A('    s_endpgm')
    A('.section .rodata,"a"')
    A('.p2align 6')
    A('.amdhsa_kernel standalone__softmax_full_bidir__decode_kernel')
    nva = (nv + 7) // 8 * 8
    A(f'  .amdhsa_next_free_vgpr {nva}')
    A('  .amdhsa_next_free_sgpr 96')
    A(f'  .amdhsa_accum_offset {nva}')
    A('  .amdhsa_group_segment_fixed_size 0')
    A('  .amdhsa_kernarg_size 48')
    A('  .amdhsa_user_sgpr_count 2')
    A('  .amdhsa_user_sgpr_kernarg_segment_ptr 1')
    A('  .amdhsa_system_sgpr_workgroup_id_x 1')
    A('.end_amdhsa_kernel')
    return '\n'.join(L) + '\n'

if __name__ == '__main__':
    import argparse
    ap = argparse.ArgumentParser()
    ap.add_argument('-o', default='r.s')
    ap.add_argument('--nw', type=int, default=8)
    ap.add_argument('--d', type=int, default=16)
    ap.add_argument('--um', type=int, default=8)
    ap.add_argument('--diag', type=int, default=0)
    ap.add_argument('--pol', type=int, default=0)
    ap.add_argument('--rot', type=str, default='')
    ap.add_argument('--gu', type=int, default=4)
    a = ap.parse_args()
    open(a.o, 'w').write(gen(a.nw, a.d, a.um, True, a.diag, a.pol, tuple(int(x) for x in a.rot.split(',')) if a.rot else None, a.gu))
```

```python
import sys, math, struct

def f2u(x):
    return struct.unpack('<I', struct.pack('<f', x))[0]

HEADER = open('standalone__softmax_full_bidir__decode.s.ref').read().split('; Override launch')[0]

def gen(NW=8, D=16, UM=16, nt=True, diag=0, pol=0, rot=None, GU=4, prio=(), bars=(), wprio=0):
    NH = 128
    NSPLIT = 2
    UT = 1024 // NW
    US = (UT - UM) // 2
    assert 2 * US + UM == UT
    UB = US + UM
    NWG = NH * NSPLIT
    C = (128 ** -0.5) * math.log2(math.e)
    L = []
    A = L.append
    ntf = ' nt' if nt else ''
    vOFF = 1
    vOF2 = 2
    vQ = 4
    vS = 8
    vACC = (vS + UB + 3) // 4 * 4
    vT = vACC + 8
    vX = vT + 8
    vR = (vX + 8 + 3) // 4 * 4
    nv = vR + 4 * D
    assert 4 * D >= 2 * NW
    lds_ml = NW * 512
    lds_role = lds_ml + NW * 8
    lds = (lds_role + 4 + 255) // 256 * 256
    A(HEADER.rstrip('\n'))
    A('; Override launch geometry by editing the next line (default: block=256,')
    A(f'; @launch grid=({NWG},1,1) block=({NW*64},1,1) lds={lds}')
    A('.amdgcn_target "amdgcn-amd-amdhsa--gfx950"')
    A('.text')
    A('.globl standalone__softmax_full_bidir__decode_kernel')
    A('.p2align 8')
    A('.type standalone__softmax_full_bidir__decode_kernel,@function')
    A('standalone__softmax_full_bidir__decode_kernel:')
    A(f'    s_cmp_ge_u32 s2, {NWG}')
    A('    s_cbranch_scc1 L_done')
    A('    s_load_dwordx4 s[4:7], s[0:1], 0       ; q, k')
    A('    s_load_dwordx4 s[8:11], s[0:1], 16     ; v, out')
    A('    s_load_dwordx4 s[12:15], s[0:1], 32')
    if diag:
        A('    s_memrealtime s[90:91]')
    if prio:
        A(f'    s_setprio {len(prio)}')
    A('    s_and_b32 s18, s2, 1')
    A('    s_lshr_b32 s17, s2, 1               ; head')
    A('    v_lshrrev_b32 v2, 6, v0')
    A('    v_and_b32 v3, 63, v0                ; lane')
    A('    v_readfirstlane_b32 s19, v2')
    A(f'    v_and_b32 v{vT}, 15, v0')
    A(f'    v_lshlrev_b32 v{vT}, 4, v{vT}         ; (lane%16)*16')
    A('    s_lshl_b32 s20, s17, 20')
    A(f'    s_mul_i32 s21, s18, {NW*(US+UM)*1024}')
    A('    s_add_u32 s21, s20, s21')
    A(f'    s_mul_i32 s23, s19, {US*1024}')
    A('    s_add_u32 s21, s21, s23')
    A(f'    s_mul_i32 s23, s19, {UM*1024}')
    A(f'    s_add_u32 s23, s23, {NW*US*1024}')
    A('    s_add_u32 s23, s23, s20')
    A(f'    v_lshlrev_b32 v{vOFF}, 4, v3')
    A(f'    v_add_u32 v{vOF2}, s23, v{vOFF}')
    A(f'    v_add_u32 v{vOFF}, s21, v{vOFF}')
    A('    s_lshl_b32 s22, s17, 8')
    if rot:
        assert US % GU == 0
        G = US // GU
        A(f'    s_mul_i32 s36, s19, {rot[0]}')
        A(f'    s_mul_i32 s37, s17, {rot[1]}')
        A('    s_add_u32 s36, s36, s37')
        A(f'    s_mul_i32 s37, s18, {rot[2]}')
        A('    s_add_u32 s36, s36, s37')
        A(f'    s_mul_i32 s37, s36, {(1<<20)//G+1}')
        A('    s_lshr_b32 s37, s37, 20')
        A(f'    s_mul_i32 s37, s37, {G}')
        A('    s_sub_u32 s36, s36, s37')
        A(f'    s_mul_i32 s36, s36, {GU*1024}')
    if wprio:
        A('    s_lshr_b32 s36, s19, 1')
        for p in (1, 2, 3):
            A(f'    s_cmp_lg_u32 s36, {p}')
            A(f'    s_cbranch_scc1 L_wp{p}')
            A(f'    s_setprio {p}')
            A(f'L_wp{p}:')
    A('    s_lshr_b32 s80, s17, 1')
    A('    s_lshl_b32 s80, s80, 2')
    A('    s_and_b32 s81, s17, 1')
    A('    s_lshl_b32 s81, s81, 4              ; shift')
    A('    s_getreg_b32 s86, hwreg(HW_REG_XCC_ID)')
    A('    s_and_b32 s86, s86, 1')
    if pol == 0:
        A('    s_xor_b32 s86, s86, 1')
    A('    s_waitcnt lgkmcnt(0)')
    A('    s_mov_b32 s24, s6')
    A('    s_mov_b32 s25, s7')
    A('    s_mov_b32 s26, 0x8000000')
    A('    s_mov_b32 s27, 0x00020000           ; K srd s[24:27]')
    A('    s_mov_b32 s28, s8')
    A('    s_mov_b32 s29, s9')
    A('    s_mov_b32 s30, 0x8000000')
    A('    s_mov_b32 s31, 0x00020000           ; V srd s[28:31]')
    A('    s_mov_b32 s32, s4')
    A('    s_mov_b32 s33, s5')
    A('    s_mov_b32 s34, 0x8000')
    A('    s_mov_b32 s35, 0x00020000           ; Q srd s[32:35]')
    A('    s_mov_b32 s52, s12')
    A('    s_mov_b32 s53, s13')
    A('    s_mov_b32 s54, 256')
    A('    s_mov_b32 s55, 0x00020000')
    A('    s_cmp_lg_u32 s19, 0')
    A('    s_cbranch_scc1 L_norole')
    A('    s_lshl_b32 s82, s86, 9')
    A('    s_add_u32 s82, s82, 0x100')
    A('    s_lshl_b32 s82, s82, s81')
    A(f'    v_mov_b32 v{vX+6}, s82')
    A(f'    v_mov_b32 v{vX+7}, s80')
    A('    s_mov_b64 exec, 1')
    A(f'    buffer_atomic_add v{vX+6}, v{vX+7}, s[52:55], 0 offen sc0 sc1')
    A('    s_mov_b64 exec, -1')
    A('L_norole:')
    A(f'    buffer_load_dwordx4 v[{vQ}:{vQ+3}], v{vT}, s[32:35], s22 offen')
    seqS = [('K', vOFF, u) for u in range(US)] + [('V', vOFF, u) for u in range(US)]
    seqB = [('K', vOFF, u) for u in range(US)] + [('K', vOF2, u) for u in range(UM)] + \
           [('V', vOFF, u) for u in range(US)] + [('V', vOF2, u) for u in range(UM)]
    def issue(seq, i):
        kind, vo, u = seq[i]
        srd = 's[24:27]' if kind == 'K' else 's[28:31]'
        off = u * 1024
        r = vR + 4 * (i % D)
        if rot and vo == vOFF:
            g = u // GU
            sc = 40 + (g % 8)
            sp = 40 + ((g - 1) % 8)
            if u % GU == 0:
                if g == 0:
                    A(f'    s_mov_b32 s{sc}, s36')
                else:
                    A(f'    s_add_u32 s{sc}, s{sp}, {GU*1024}')
                    A(f'    s_cmp_ge_u32 s{sc}, {US*1024}')
                    A(f'    s_cselect_b32 s{sc}, 0, s{sc}')
            A(f'    buffer_load_dwordx4 v[{r}:{r+3}], v{vo}, {srd}, s{sc} offen offset:{(u%GU)*1024}{ntf}')
            return
        imm = off % 4096
        so = off - imm
        sreg = (64 if rot else 40) + (i % 8)
        if so == 0:
            A(f'    buffer_load_dwordx4 v[{r}:{r+3}], v{vo}, {srd}, 0 offen offset:{imm}{ntf}')
        else:
            A(f'    s_mov_b32 s{sreg}, {so}')
            A(f'    buffer_load_dwordx4 v[{r}:{r+3}], v{vo}, {srd}, s{sreg} offen offset:{imm}{ntf}')
    for i in range(D):
        issue(seqS, i)
    A('    s_mov_b32 s48, s10')
    A('    s_mov_b32 s49, s11')
    A('    s_mov_b32 s50, 0x8000')
    A('    s_mov_b32 s51, 0x00020000')
    A('    s_mov_b32 s56, s14')
    A('    s_mov_b32 s57, s15')
    A(f'    s_mov_b32 s58, {NWG*1024 if diag != 2 else 0x200000}')
    A('    s_mov_b32 s59, 0x00020000')
    A(f'    s_mov_b32 s60, 0x{f2u(C):08x}       ; scale*log2e')
    A('    s_mov_b32 s61, 0xffff0000')
    for j in range(8):
        A(f'    v_mov_b32 v{vACC+j}, 0')
    A(f'    v_mov_b32 v{vX+5}, {lds_role}')
    A('    s_cmp_lg_u32 s19, 0')
    A('    s_cbranch_scc1 L_rolebar')
    A(f'    s_waitcnt vmcnt({D+1})')
    A(f'    v_readfirstlane_b32 s83, v{vX+6}')
    A('    s_nop 3')
    A('    s_lshr_b32 s83, s83, s81')
    A('    s_lshr_b32 s83, s83, 8')
    A('    s_and_b32 s83, s83, 3')
    A('    s_lshr_b32 s87, s83, 1')
    A('    s_xor_b32 s87, s87, 1')
    A('    s_cmp_eq_u32 s83, 0')
    A('    s_cselect_b32 s87, s86, s87')
    A(f'    v_mov_b32 v{vX+6}, s87')
    A(f'    ds_write_b32 v{vX+5}, v{vX+6}')
    A('    s_waitcnt lgkmcnt(0)')
    A('L_rolebar:')
    A('    s_barrier')
    A(f'    ds_read_b32 v{vX+6}, v{vX+5}')
    state = {'pend': []}
    def dpp_flush(force=False):
        p = state['pend']
        if not p:
            return
        for rot in (8, 4, 2, 1):
            for u in p:
                A(f'    v_add_f32_dpp v{vS+u}, v{vS+u}, v{vS+u} row_ror:{rot} row_mask:0xf bank_mask:0xf')
            if len(p) < 3:
                A('    s_nop 1')
        state['pend'] = []
    def gate(seq, i):
        rem = len(seq) - i
        if i >= US - D:
            if rem in prio:
                A(f'    s_setprio {len(prio) - 1 - prio.index(rem)}')
            if rem in bars:
                A('    s_barrier')
    def kstep(seq, i):
        NL = len(seq)
        gate(seq, i)
        A(f'    s_waitcnt vmcnt({min(D-1, NL-1-i)})')
        r = vR + 4 * (i % D)
        A(f'    v_dot2_f32_bf16 v{vS+i}, v{r}, v{vQ}, 0')
        for j in range(1, 4):
            A(f'    v_dot2_f32_bf16 v{vS+i}, v{r+j}, v{vQ+j}, v{vS+i}')
        if i + D < NL:
            issue(seq, i + D)
        if len(state['pend']) >= 4:
            dpp_flush()
        state['pend'].append(i)
    m = vX
    lsum = m + 2
    def tail(seq, i0, U):
        NL = len(seq)
        for i in range(i0, U):
            kstep(seq, i)
        A('    s_nop 3')
        dpp_flush()
        if diag == 2:
            A('    s_memrealtime s[88:89]')
        A(f'    v_max3_f32 v{m}, v{vS}, v{vS+1}, v{vS+2}')
        k = 3
        while k + 1 < U:
            A(f'    v_max3_f32 v{m}, v{m}, v{vS+k}, v{vS+k+1}')
            k += 2
        if k < U:
            A(f'    v_max_f32 v{m}, v{m}, v{vS+k}')
        A(f'    v_mov_b32 v{m+1}, v{m}')
        A('    s_nop 1')
        A(f'    v_permlane32_swap_b32 v{m}, v{m+1}')
        A('    s_nop 1')
        A(f'    v_max_f32 v{m}, v{m}, v{m+1}')
        A(f'    v_mov_b32 v{m+1}, v{m}')
        A('    s_nop 1')
        A(f'    v_permlane16_swap_b32 v{m}, v{m+1}')
        A('    s_nop 1')
        A(f'    v_max_f32 v{m}, v{m}, v{m+1}')
        A(f'    v_mul_f32 v{m+1}, s60, v{m}')
        for u in range(U):
            A(f'    v_fma_f32 v{vS+u}, v{vS+u}, s60, -v{m+1}')
        for u in range(U):
            A(f'    v_exp_f32 v{vS+u}, v{vS+u}')
        A('    s_nop 0')
        A(f'    v_add_f32 v{lsum}, v{vS}, v{vS+1}')
        A(f'    v_add_f32 v{lsum+1}, v{vS+2}, v{vS+3}')
        for u in range(4, U, 2):
            A(f'    v_add_f32 v{lsum}, v{lsum}, v{vS+u}')
            A(f'    v_add_f32 v{lsum+1}, v{lsum+1}, v{vS+u+1}')
        A(f'    v_add_f32 v{lsum}, v{lsum}, v{lsum+1}')
        for i in range(U, NL):
            u = i - U
            gate(seq, i)
            A(f'    s_waitcnt vmcnt({min(D-1, NL-1-i)})')
            r = vR + 4 * (i % D)
            for j in range(4):
                A(f'    v_lshlrev_b32 v{vT+2*j}, 16, v{r+j}')
                A(f'    v_and_b32 v{vT+2*j+1}, s61, v{r+j}')
            if i + D < NL:
                issue(seq, i + D)
            for j in range(8):
                A(f'    v_fmac_f32 v{vACC+j}, v{vS+u}, v{vT+j}')
    i0 = US - D
    for i in range(i0):
        kstep(seqS, i)
    A('    s_waitcnt lgkmcnt(0)')
    A(f'    v_readfirstlane_b32 s87, v{vX+6}')
    A('    s_nop 3')
    if UM:
        A('    s_cmp_lg_u32 s87, 0')
        A('    s_cbranch_scc1 L_big')
    saved = list(state['pend'])
    tail(seqS, i0, US)
    if UM:
        A('    s_branch L_join')
        A('L_big:')
        state['pend'] = saved
        tail(seqB, i0, UB)
    A('L_join:')
    A(f'    v_mov_b32 v{lsum+1}, v{lsum}')
    A('    s_nop 1')
    for j in range(4):
        A(f'    v_permlane32_swap_b32 v{vACC+j}, v{vACC+4+j}')
    A(f'    v_permlane32_swap_b32 v{lsum}, v{lsum+1}')
    A('    s_nop 1')
    for j in range(4):
        A(f'    v_add_f32 v{vACC+j}, v{vACC+j}, v{vACC+4+j}')
    A(f'    v_add_f32 v{lsum}, v{lsum}, v{lsum+1}')
    A(f'    v_mov_b32 v{lsum+1}, v{lsum}')
    A('    s_nop 1')
    A(f'    v_permlane16_swap_b32 v{vACC}, v{vACC+2}')
    A(f'    v_permlane16_swap_b32 v{vACC+1}, v{vACC+3}')
    A(f'    v_permlane16_swap_b32 v{lsum}, v{lsum+1}')
    A('    s_nop 1')
    A(f'    v_add_f32 v{vACC}, v{vACC}, v{vACC+2}')
    A(f'    v_add_f32 v{vACC+1}, v{vACC+1}, v{vACC+3}')
    A(f'    v_add_f32 v{m+1}, v{lsum}, v{lsum+1}   ; wave l  (v{m}=m, v{m+1}=l)')
    t = vT
    A(f'    v_and_b32 v{t}, 15, v3')
    A(f'    v_lshlrev_b32 v{t}, 5, v{t}          ; c*32 bytes')
    A(f'    v_lshrrev_b32 v{t+1}, 4, v3')
    A(f'    v_lshl_add_u32 v{t}, v{t+1}, 3, v{t} ; + r*8')
    A('    s_lshl_b32 s62, s19, 9')
    A(f'    v_add_u32 v{t}, s62, v{t}')
    if diag == 2:
        A('    s_memrealtime s[84:85]')
        A('    s_lshl_b32 s93, s2, 3')
        A('    s_add_u32 s93, s93, s19')
        A('    s_lshl_b32 s93, s93, 2')
        A('    s_add_u32 s93, s93, 0x110000')
        A('    s_waitcnt lgkmcnt(0)')
        A(f'    v_mov_b32 v{vR+40}, s84')
        A(f'    v_mov_b32 v{vR+41}, 0')
        A('    s_mov_b64 exec, 1')
        A(f'    buffer_store_dword v{vR+40}, v{vR+41}, s[56:59], s93 offen')
        A('    s_mov_b64 exec, -1')
    A(f'    ds_write_b64 v{t}, v[{vACC}:{vACC+1}]')
    A('    s_lshl_b32 s62, s19, 3')
    A(f'    s_add_u32 s62, s62, {lds_ml}')
    A(f'    v_mov_b32 v{t+2}, s62')
    A(f'    ds_write_b64 v{t+2}, v[{m}:{m+1}]')
    A('    s_waitcnt lgkmcnt(0)')
    A('    s_barrier')
    A('    s_cmp_lg_u32 s19, 0')
    A('    s_cbranch_scc1 L_done')
    if diag == 2:
        A('    s_memrealtime s[92:93]')
        A('    s_getreg_b32 s94, hwreg(HW_REG_XCC_ID)')
        A('    s_waitcnt lgkmcnt(0)')
        A('    s_lshl_b32 s93, s2, 4')
        A('    s_add_u32 s93, s93, 0x100000')
        A(f'    v_mov_b32 v{vR+40}, s90')
        A(f'    v_mov_b32 v{vR+41}, s92')
        A(f'    v_mov_b32 v{vR+42}, s94')
        A(f'    v_mov_b32 v{vR+43}, s88')
        A(f'    v_mov_b32 v{vT}, 0')
        A('    s_mov_b64 exec, 1')
        A(f'    buffer_store_dwordx4 v[{vR+40}:{vR+43}], v{vT}, s[56:59], s93 offen')
        A('    s_mov_b64 exec, -1')
    A(f'    v_and_b32 v{t}, {NW-1}, v3')
    A(f'    v_lshlrev_b32 v{t}, 3, v{t}')
    A(f'    ds_read_b64 v[{m}:{m+1}], v{t} offset:{lds_ml}')
    A(f'    v_lshlrev_b32 v{t+1}, 3, v3           ; lane*8')
    for w in range(NW):
        A(f'    ds_read_b64 v[{vR+2*w}:{vR+2*w+1}], v{t+1} offset:{w*512}')
    A(f'    s_waitcnt lgkmcnt({min(NW,15)})')
    M = m + 2
    A(f'    v_mov_b32 v{M}, v{m}')
    A('    s_nop 1')
    rots = [r for r in (8, 4, 2, 1) if r < NW]
    for rot in rots:
        A(f'    v_max_f32_dpp v{M}, v{M}, v{M} row_ror:{rot} row_mask:0xf bank_mask:0xf')
        A('    s_nop 1')
    F = m + 3
    A(f'    v_sub_f32 v{F}, v{m}, v{M}')
    A(f'    v_mul_f32 v{F}, s60, v{F}')
    A(f'    v_exp_f32 v{F}, v{F}')
    A('    s_nop 0')
    Lr = m + 4
    A(f'    v_mul_f32 v{Lr}, v{m+1}, v{F}')
    A('    s_nop 1')
    for rot in rots:
        A(f'    v_add_f32_dpp v{Lr}, v{Lr}, v{Lr} row_ror:{rot} row_mask:0xf bank_mask:0xf')
        A('    s_nop 1')
    for w in range(NW):
        A(f'    v_readlane_b32 s{64+w}, v{F}, {w}')
    A('    s_waitcnt lgkmcnt(0)')
    o = vACC
    assert vACC % 4 == 0
    A(f'    v_mul_f32 v{o}, s64, v{vR}')
    A(f'    v_mul_f32 v{o+1}, s64, v{vR+1}')
    for w in range(1, NW):
        A(f'    v_fmac_f32 v{o}, s{64+w}, v{vR+2*w}')
        A(f'    v_fmac_f32 v{o+1}, s{64+w}, v{vR+2*w+1}')
    A(f'    v_mov_b32 v{o+2}, v{M}')
    A(f'    v_mov_b32 v{o+3}, v{Lr}')
    A(f'    s_mul_i32 s62, s17, {NSPLIT}')
    A('    s_add_u32 s63, s62, s18')
    A('    s_lshl_b32 s63, s63, 10')
    A('    s_lshl_b32 s62, s62, 10')
    A(f'    v_lshlrev_b32 v{t}, 4, v3             ; lane*16')
    A(f'    buffer_store_dwordx4 v[{o}:{o+3}], v{t}, s[56:59], s63 offen sc0 sc1')
    A('    s_waitcnt vmcnt(0)')
    A('    s_lshl_b32 s82, 1, s81')
    A(f'    v_mov_b32 v{t+2}, s82')
    A(f'    v_mov_b32 v{t+3}, s80')
    A('    s_mov_b64 exec, 1')
    A(f'    buffer_atomic_add v{t+2}, v{t+3}, s[52:55], 0 offen sc0 sc1')
    A('    s_mov_b64 exec, -1')
    A('    s_waitcnt vmcnt(0)')
    A(f'    v_readfirstlane_b32 s83, v{t+2}')
    A('    s_nop 3')
    A('    s_lshr_b32 s83, s83, s81')
    A('    s_and_b32 s83, s83, 0xff')
    A(f'    s_cmp_lg_u32 s83, {NSPLIT-1}')
    A('    s_cbranch_scc1 L_done')
    for sidx in range(NSPLIT):
        A(f'    buffer_load_dwordx4 v[{vR+4*sidx}:{vR+4*sidx+3}], v{t}, s[56:59], s62 offen offset:{sidx*1024} sc0 sc1')
    A('    s_waitcnt vmcnt(0)')
    A(f'    v_max_f32 v{M}, v{vR+2}, v{vR+6}')
    for sidx in range(NSPLIT):
        A(f'    v_sub_f32 v{vR+4*sidx+2}, v{vR+4*sidx+2}, v{M}')
        A(f'    v_mul_f32 v{vR+4*sidx+2}, s60, v{vR+4*sidx+2}')
        A(f'    v_exp_f32 v{vR+4*sidx+2}, v{vR+4*sidx+2}')
    A('    s_nop 0')
    A(f'    v_mul_f32 v{o}, v{vR}, v{vR+2}')
    A(f'    v_mul_f32 v{o+1}, v{vR+1}, v{vR+2}')
    A(f'    v_mul_f32 v{o+2}, v{vR+3}, v{vR+2}')
    for sidx in range(1, NSPLIT):
        b = vR + 4 * sidx
        A(f'    v_fmac_f32 v{o}, v{b}, v{b+2}')
        A(f'    v_fmac_f32 v{o+1}, v{b+1}, v{b+2}')
        A(f'    v_fmac_f32 v{o+2}, v{b+3}, v{b+2}')
    A(f'    v_rcp_f32 v{o+2}, v{o+2}')
    A('    s_nop 0')
    A(f'    v_mul_f32 v{o}, v{o}, v{o+2}')
    A(f'    v_mul_f32 v{o+1}, v{o+1}, v{o+2}')
    A(f'    v_cvt_pk_bf16_f32 v{o}, v{o}, v{o+1}')
    A(f'    v_lshlrev_b32 v{t+1}, 2, v3')
    A(f'    buffer_store_dword v{o}, v{t+1}, s[48:51], s22 offen')
    A('L_done:')
    A('    s_endpgm')
    A('.section .rodata,"a"')
    A('.p2align 6')
    A('.amdhsa_kernel standalone__softmax_full_bidir__decode_kernel')
    nva = (nv + 7) // 8 * 8
    A(f'  .amdhsa_next_free_vgpr {nva}')
    A('  .amdhsa_next_free_sgpr 96')
    A(f'  .amdhsa_accum_offset {nva}')
    A('  .amdhsa_group_segment_fixed_size 0')
    A('  .amdhsa_kernarg_size 48')
    A('  .amdhsa_user_sgpr_count 2')
    A('  .amdhsa_user_sgpr_kernarg_segment_ptr 1')
    A('  .amdhsa_system_sgpr_workgroup_id_x 1')
    A('.end_amdhsa_kernel')
    return '\n'.join(L) + '\n'

if __name__ == '__main__':
    import argparse
    ap = argparse.ArgumentParser()
    ap.add_argument('-o', default='r.s')
    ap.add_argument('--nw', type=int, default=8)
    ap.add_argument('--d', type=int, default=16)
    ap.add_argument('--um', type=int, default=16)
    ap.add_argument('--diag', type=int, default=0)
    ap.add_argument('--pol', type=int, default=0)
    ap.add_argument('--rot', type=str, default='')
    ap.add_argument('--gu', type=int, default=4)
    ap.add_argument('--prio', type=str, default='')
    ap.add_argument('--bars', type=str, default='')
    ap.add_argument('--wprio', type=int, default=0)
    a = ap.parse_args()
    tl = lambda x: tuple(int(y) for y in x.split(',')) if x else ()
    open(a.o, 'w').write(gen(a.nw, a.d, a.um, True, a.diag, a.pol, tuple(int(x) for x in a.rot.split(',')) if a.rot else None, a.gu, tl(a.prio), tl(a.bars), a.wprio))
```

```python
import sys, math, struct

def f2u(x):
    return struct.unpack('<I', struct.pack('<f', x))[0]

HEADER = open('standalone__softmax_full_bidir__decode.s.ref').read().split('; Override launch')[0]

def gen(NW=8, D=16, UM=16, nt=True, diag=0, pol=0, rot=None, GU=4, prio=(), bars=(), wprio=0, XM=None, Y=0, TS=8, TB=0, xp=1, NCW=4, pref=1):
    NH = 128
    NSPLIT = 2
    UT = 1024 // NW
    US = (UT - UM) // 2
    assert 2 * US + UM == UT
    if XM is None:
        XM = UM
    UB = US - TB
    USM = US - TS
    assert UM == 8 and TS in (0, 8) and TB in (0, 8) and D >= 16
    NP = 8 + (8 if TS else 0) + (8 if TB else 0)
    assert UB % 2 == 0 and USM % 2 == 0
    NWG = NH * NSPLIT
    C = (128 ** -0.5) * math.log2(math.e)
    L = []
    A = L.append
    ntf = ' nt' if nt else ''
    vOFF = 1
    vOF2 = 2
    vQ = 4
    vS = 8
    vACC = (vS + UB + 3) // 4 * 4
    vT = vACC + 8
    vX = vT + 8
    vR = (vX + 8 + 3) // 4 * 4
    nv = vR + 4 * D
    assert 4 * D >= 2 * NW
    lds_ml = NW * 512
    lds_role = lds_ml + NW * 8
    lds = (lds_role + 4 + 255) // 256 * 256
    A(HEADER.rstrip('\n'))
    A('; Override launch geometry by editing the next line (default: block=256,')
    A(f'; @launch grid=({NWG},1,1) block=({NW*64},1,1) lds={lds}')
    A('.amdgcn_target "amdgcn-amd-amdhsa--gfx950"')
    A('.text')
    A('.globl standalone__softmax_full_bidir__decode_kernel')
    A('.p2align 8')
    A('.type standalone__softmax_full_bidir__decode_kernel,@function')
    A('standalone__softmax_full_bidir__decode_kernel:')
    A(f'    s_cmp_ge_u32 s2, {NWG}')
    A('    s_cbranch_scc1 L_done')
    A('    s_load_dwordx4 s[4:7], s[0:1], 0       ; q, k')
    A('    s_load_dwordx4 s[8:11], s[0:1], 16     ; v, out')
    A('    s_load_dwordx4 s[12:15], s[0:1], 32')
    if diag:
        A('    s_memrealtime s[90:91]')
    if prio:
        A(f'    s_setprio {len(prio)}')
    if xp:
        A('    s_bfe_u32 s18, s2, 0x10001')
        A('    s_xor_b32 s16, s2, s18')
        A('    s_and_b32 s16, s16, 1')
        A('    s_lshr_b32 s17, s2, 2')
        A('    s_lshl_b32 s17, s17, 1')
        A('    s_add_u32 s17, s17, s16             ; head')
    else:
        A('    s_and_b32 s18, s2, 1')
        A('    s_lshr_b32 s17, s2, 1               ; head')
    A('    v_lshrrev_b32 v2, 6, v0')
    A('    v_and_b32 v3, 63, v0                ; lane')
    A('    v_readfirstlane_b32 s19, v2')
    A(f'    v_and_b32 v{vT}, 15, v0')
    A(f'    v_lshlrev_b32 v{vT}, 4, v{vT}         ; (lane%16)*16')
    A('    s_lshl_b32 s20, s17, 20')
    A(f'    s_mul_i32 s21, s18, {NW*(US+UM)*1024}')
    A('    s_add_u32 s21, s20, s21')
    A(f'    s_mul_i32 s23, s19, {US*1024}')
    A('    s_add_u32 s21, s21, s23')
    A(f'    s_mul_i32 s23, s19, {UM*1024}')
    A(f'    s_add_u32 s23, s23, {NW*US*1024}')
    A('    s_add_u32 s23, s23, s20')
    A(f'    v_lshlrev_b32 v{vOFF}, 4, v3')
    A(f'    v_mov_b32 v{vOF2}, v{vOFF}             ; lane*16')
    A(f'    v_add_u32 v{vOFF}, s21, v{vOFF}')
    if Y:
        A('    s_xor_b32 s36, s18, 1')
        A(f'    s_mul_i32 s36, s36, {NW*(US+UM)*1024}')
        A('    s_add_u32 s36, s36, s20')
        A(f'    s_mul_i32 s37, s19, {US*1024}')
        A('    s_add_u32 s36, s36, s37')
        A('    v_lshlrev_b32 v0, 4, v3')
        A('    v_add_u32 v0, s36, v0')
    A('    s_lshl_b32 s22, s17, 8')
    if rot:
        assert US % GU == 0
        G = US // GU
        A(f'    s_mul_i32 s36, s19, {rot[0]}')
        A(f'    s_mul_i32 s37, s17, {rot[1]}')
        A('    s_add_u32 s36, s36, s37')
        A(f'    s_mul_i32 s37, s18, {rot[2]}')
        A('    s_add_u32 s36, s36, s37')
        A(f'    s_mul_i32 s37, s36, {(1<<20)//G+1}')
        A('    s_lshr_b32 s37, s37, 20')
        A(f'    s_mul_i32 s37, s37, {G}')
        A('    s_sub_u32 s36, s36, s37')
        A(f'    s_mul_i32 s36, s36, {GU*1024}')
    if wprio:
        A('    s_lshr_b32 s36, s19, 1')
        for p in (1, 2, 3):
            A(f'    s_cmp_lg_u32 s36, {p}')
            A(f'    s_cbranch_scc1 L_wp{p}')
            A(f'    s_setprio {p}')
            A(f'L_wp{p}:')
    A('    s_lshr_b32 s80, s17, 1')
    A('    s_lshl_b32 s80, s80, 2')
    A('    s_and_b32 s81, s17, 1')
    A('    s_lshl_b32 s81, s81, 4              ; shift')
    A('    s_getreg_b32 s86, hwreg(HW_REG_XCC_ID)')
    A('    s_and_b32 s86, s86, 1')
    if pol == 0:
        A('    s_xor_b32 s86, s86, 1')
    A('    s_waitcnt lgkmcnt(0)')
    A('    s_mov_b32 s24, s6')
    A('    s_mov_b32 s25, s7')
    A('    s_mov_b32 s26, 0x8000000')
    A('    s_mov_b32 s27, 0x00020000           ; K srd s[24:27]')
    A('    s_mov_b32 s28, s8')
    A('    s_mov_b32 s29, s9')
    A('    s_mov_b32 s30, 0x8000000')
    A('    s_mov_b32 s31, 0x00020000           ; V srd s[28:31]')
    A('    s_mov_b32 s32, s4')
    A('    s_mov_b32 s33, s5')
    A('    s_mov_b32 s34, 0x8000')
    A('    s_mov_b32 s35, 0x00020000           ; Q srd s[32:35]')
    A('    s_mov_b32 s52, s12')
    A('    s_mov_b32 s53, s13')
    A('    s_mov_b32 s54, 256')
    A('    s_mov_b32 s55, 0x00020000')
    A('    s_cmp_lg_u32 s19, 0')
    A('    s_cbranch_scc1 L_norole')
    A('    s_lshl_b32 s82, s86, 9')
    A('    s_add_u32 s82, s82, 0x100')
    A('    s_lshl_b32 s82, s82, s81')
    A(f'    v_mov_b32 v{vX+6}, s82')
    A(f'    v_mov_b32 v{vX+7}, s80')
    A('    s_mov_b64 exec, 1')
    A(f'    buffer_atomic_add v{vX+6}, v{vX+7}, s[52:55], 0 offen sc0 sc1')
    A('    s_mov_b64 exec, -1')
    A('L_norole:')
    A(f'    buffer_load_dwordx4 v[{vQ}:{vQ+3}], v{vT}, s[32:35], s22 offen')
    seqS = [('K', vOFF, u) for u in range(USM)] + [('V', vOFF, u) for u in range(USM)]
    seqB = [('K', vOFF, u) for u in range(UB)] + [('V', vOFF, u) for u in range(UB)]
    def issue(seq, i):
        kind, vo, u = seq[i]
        srd = 's[24:27]' if kind == 'K' else 's[28:31]'
        off = u * 1024
        r = vR + 4 * (i % D)
        if rot and vo == vOFF:
            g = u // GU
            sc = 40 + (g % 8)
            sp = 40 + ((g - 1) % 8)
            if u % GU == 0:
                if g == 0:
                    A(f'    s_mov_b32 s{sc}, s36')
                else:
                    A(f'    s_add_u32 s{sc}, s{sp}, {GU*1024}')
                    A(f'    s_cmp_ge_u32 s{sc}, {US*1024}')
                    A(f'    s_cselect_b32 s{sc}, 0, s{sc}')
            A(f'    buffer_load_dwordx4 v[{r}:{r+3}], v{vo}, {srd}, s{sc} offen offset:{(u%GU)*1024}{ntf}')
            return
        imm = off % 4096
        so = off - imm
        sreg = (64 if rot else 40) + (i % 8)
        if so == 0:
            A(f'    buffer_load_dwordx4 v[{r}:{r+3}], v{vo}, {srd}, 0 offen offset:{imm}{ntf}')
        else:
            A(f'    s_mov_b32 s{sreg}, {so}')
            A(f'    buffer_load_dwordx4 v[{r}:{r+3}], v{vo}, {srd}, s{sreg} offen offset:{imm}{ntf}')
    for i in range(D):
        issue(seqS, i)
    A('    s_mov_b32 s48, s10')
    A('    s_mov_b32 s49, s11')
    A('    s_mov_b32 s50, 0x8000')
    A('    s_mov_b32 s51, 0x00020000')
    A('    s_mov_b32 s56, s14')
    A('    s_mov_b32 s57, s15')
    A(f'    s_mov_b32 s58, {NWG*1024 if diag != 2 else 0x200000}')
    A('    s_mov_b32 s59, 0x00020000')
    A(f'    s_mov_b32 s60, 0x{f2u(C):08x}       ; scale*log2e')
    A('    s_mov_b32 s61, 0xffff0000')
    for j in range(8):
        A(f'    v_mov_b32 v{vACC+j}, 0')
    A(f'    v_mov_b32 v{vX+5}, {lds_role}')
    A('    s_cmp_lg_u32 s19, 0')
    A('    s_cbranch_scc1 L_rolebar')
    A(f'    s_waitcnt vmcnt({D+1})')
    A(f'    v_readfirstlane_b32 s83, v{vX+6}')
    A('    s_nop 3')
    A('    s_lshr_b32 s83, s83, s81')
    A('    s_lshr_b32 s83, s83, 8')
    A('    s_and_b32 s83, s83, 3')
    A('    s_lshr_b32 s87, s83, 1')
    A('    s_xor_b32 s87, s87, 1')
    A('    s_cmp_eq_u32 s83, 0')
    A('    s_cselect_b32 s87, s86, s87')
    A(f'    v_mov_b32 v{vX+6}, s87')
    A(f'    ds_write_b32 v{vX+5}, v{vX+6}')
    A('    s_waitcnt lgkmcnt(0)')
    A('L_rolebar:')
    A('    s_barrier')
    A(f'    ds_read_b32 v{vX+6}, v{vX+5}')
    state = {'pend': []}
    def dpp_flush(force=False):
        p = state['pend']
        if not p:
            return
        for rot in (8, 4, 2, 1):
            for u in p:
                A(f'    v_add_f32_dpp v{vS+u}, v{vS+u}, v{vS+u} row_ror:{rot} row_mask:0xf bank_mask:0xf')
            if len(p) < 3:
                A('    s_nop 1')
        state['pend'] = []
    def gate(seq, i):
        rem = len(seq) - i
        if i >= US - D:
            if rem in prio:
                A(f'    s_setprio {len(prio) - 1 - prio.index(rem)}')
            if rem in bars:
                A('    s_barrier')
    def kstep(seq, i):
        NL = len(seq)
        gate(seq, i)
        A(f'    s_waitcnt vmcnt({min(D-1, NL-1-i)})')
        r = vR + 4 * (i % D)
        A(f'    v_dot2_f32_bf16 v{vS+i}, v{r}, v{vQ}, 0')
        for j in range(1, 4):
            A(f'    v_dot2_f32_bf16 v{vS+i}, v{r+j}, v{vQ+j}, v{vS+i}')
        if i + D < NL:
            issue(seq, i + D)
        if len(state['pend']) >= 4:
            dpp_flush()
        state['pend'].append(i)
    m = vX
    lsum = m + 2
    def tail(seq, i0, U):
        NL = len(seq)
        for i in range(i0, U):
            kstep(seq, i)
        A('    s_nop 3')
        dpp_flush()
        if diag == 2:
            A('    s_memrealtime s[88:89]')
        A(f'    v_max3_f32 v{m}, v{vS}, v{vS+1}, v{vS+2}')
        k = 3
        while k + 1 < U:
            A(f'    v_max3_f32 v{m}, v{m}, v{vS+k}, v{vS+k+1}')
            k += 2
        if k < U:
            A(f'    v_max_f32 v{m}, v{m}, v{vS+k}')
        A(f'    v_mov_b32 v{m+1}, v{m}')
        A('    s_nop 1')
        A(f'    v_permlane32_swap_b32 v{m}, v{m+1}')
        A('    s_nop 1')
        A(f'    v_max_f32 v{m}, v{m}, v{m+1}')
        A(f'    v_mov_b32 v{m+1}, v{m}')
        A('    s_nop 1')
        A(f'    v_permlane16_swap_b32 v{m}, v{m+1}')
        A('    s_nop 1')
        A(f'    v_max_f32 v{m}, v{m}, v{m+1}')
        A(f'    v_mul_f32 v{m+1}, s60, v{m}')
        for u in range(U):
            A(f'    v_fma_f32 v{vS+u}, v{vS+u}, s60, -v{m+1}')
        for u in range(U):
            A(f'    v_exp_f32 v{vS+u}, v{vS+u}')
        A('    s_nop 0')
        A(f'    v_add_f32 v{lsum}, v{vS}, v{vS+1}')
        A(f'    v_add_f32 v{lsum+1}, v{vS+2}, v{vS+3}')
        for u in range(4, U, 2):
            A(f'    v_add_f32 v{lsum}, v{lsum}, v{vS+u}')
            A(f'    v_add_f32 v{lsum+1}, v{lsum+1}, v{vS+u+1}')
        A(f'    v_add_f32 v{lsum}, v{lsum}, v{lsum+1}')
        for i in range(U, NL):
            u = i - U
            gate(seq, i)
            A(f'    s_waitcnt vmcnt({min(D-1, NL-1-i)})')
            r = vR + 4 * (i % D)
            for j in range(4):
                A(f'    v_lshlrev_b32 v{vT+2*j}, 16, v{r+j}')
                A(f'    v_and_b32 v{vT+2*j+1}, s61, v{r+j}')
            if i + D < NL:
                issue(seq, i + D)
            for j in range(8):
                A(f'    v_fmac_f32 v{vACC+j}, v{vS+u}, v{vT+j}')
    i0 = min(USM, UB) - D
    for i in range(i0):
        kstep(seqS, i)
    A('    s_waitcnt lgkmcnt(0)')
    A(f'    v_readfirstlane_b32 s87, v{vX+6}')
    A('    s_nop 3')
    if UM:
        A('    s_cmp_lg_u32 s87, 0')
        A('    s_cbranch_scc1 L_big')
    saved = list(state['pend'])
    tail(seqS, i0, USM)
    if UM:
        A('    s_branch L_claim')
        A('L_big:')
        state['pend'] = saved
        tail(seqB, i0, UB)
    A('L_claim:')
    A(f'    s_cmp_ge_u32 s19, {NCW}')
    A('    s_cbranch_scc1 L_join')
    cl = vX + 6
    A('    s_lshl_b32 s82, 4, s81')
    A('    s_xor_b32 s84, s18, s87')
    A(f'    s_mul_i32 s84, s84, {NW*(US+UM)*1024}')
    A(f'    s_add_u32 s84, s84, {(US-8)*1024 - 8*US*1024 + (1<<24)}')
    A(f'    s_add_u32 s84, s84, s20')
    A('    s_xor_b32 s85, s18, s87')
    A('    s_xor_b32 s85, s85, 1')
    A(f'    s_mul_i32 s85, s85, {NW*(US+UM)*1024}')
    A(f'    s_add_u32 s85, s85, {(US-8)*1024 - 16*US*1024 + (1<<24)}')
    A(f'    s_add_u32 s85, s85, s20')
    A(f'    s_add_u32 s88, s20, {NW*US*1024}')
    A(f'    v_mov_b32 v{cl+1}, s80')
    def claim():
        A(f'    v_mov_b32 v{cl}, s82')
        A('    s_mov_b64 exec, 1')
        A(f'    buffer_atomic_add v{cl}, v{cl+1}, s[52:55], 0 offen sc0 sc1')
        A('    s_mov_b64 exec, -1')
    if pref:
        claim()
    A('L_cloop:')
    if not pref:
        claim()
    A('    s_waitcnt vmcnt(0)')
    A(f'    v_readfirstlane_b32 s83, v{cl}')
    A('    s_nop 3')
    A('    s_lshr_b32 s83, s83, s81')
    A('    s_bfe_u32 s83, s83, 0x60002         ; ticket')
    A(f'    s_cmp_ge_u32 s83, {NP}')
    A('    s_cbranch_scc1 L_join')
    A('    s_lshl_b32 s40, s83, 13')
    A('    s_add_u32 s40, s40, s88')
    A(f'    s_mul_i32 s41, s83, {US*1024}')
    first, second = ('s84', 's85') if TS else ('s85', 's84')
    if TS and TB:
        A('    s_cmp_ge_u32 s83, 16')
        A('    s_cselect_b32 s42, s85, s84')
    elif TS:
        A('    s_mov_b32 s42, s84')
    else:
        A(f'    s_add_u32 s42, s85, {8*US*1024}')
    A('    s_add_u32 s41, s41, s42')
    A(f'    s_sub_u32 s41, s41, {1<<24}')
    A('    s_cmp_lt_u32 s83, 8')
    A('    s_cselect_b32 s40, s40, s41')
    A('    s_add_u32 s41, s40, 4096')
    for kind, srd, b in (('K', 's[24:27]', 0), ('V', 's[28:31]', 8)):
        for j in range(8):
            r = vR + 4 * (b + j)
            A(f'    buffer_load_dwordx4 v[{r}:{r+3}], v{vOF2}, {srd}, s{40 + j//4} offen offset:{(j%4)*1024}{ntf}')
    ex = 1 if pref else 0
    if pref:
        claim()
    for j in range(8):
        r = vR + 4 * j
        A(f'    s_waitcnt vmcnt({15 + ex - j})')
        A(f'    v_dot2_f32_bf16 v{vS+j}, v{r}, v{vQ}, 0')
        for k in range(1, 4):
            A(f'    v_dot2_f32_bf16 v{vS+j}, v{r+k}, v{vQ+k}, v{vS+j}')
    A('    s_nop 3')
    for rr in (8, 4, 2, 1):
        for j in range(8):
            A(f'    v_add_f32_dpp v{vS+j}, v{vS+j}, v{vS+j} row_ror:{rr} row_mask:0xf bank_mask:0xf')
    mn = vS + 8
    A(f'    v_max3_f32 v{mn}, v{m}, v{vS}, v{vS+1}')
    for j in (2, 4, 6):
        A(f'    v_max3_f32 v{mn}, v{mn}, v{vS+j}, v{vS+j+1}')
    for sw in ('v_permlane32_swap_b32', 'v_permlane16_swap_b32'):
        A(f'    v_mov_b32 v{mn+1}, v{mn}')
        A('    s_nop 1')
        A(f'    {sw} v{mn}, v{mn+1}')
        A('    s_nop 1')
        A(f'    v_max_f32 v{mn}, v{mn}, v{mn+1}')
    A(f'    v_mul_f32 v{mn+1}, s60, v{mn}')
    A(f'    v_fma_f32 v{mn+2}, v{m}, s60, -v{mn+1}')
    for j in range(8):
        A(f'    v_fma_f32 v{vS+j}, v{vS+j}, s60, -v{mn+1}')
    A(f'    v_exp_f32 v{mn+2}, v{mn+2}            ; alpha')
    for j in range(8):
        A(f'    v_exp_f32 v{vS+j}, v{vS+j}')
    A(f'    v_mov_b32 v{m}, v{mn}')
    A(f'    v_mul_f32 v{lsum}, v{lsum}, v{mn+2}')
    for j in range(8):
        A(f'    v_mul_f32 v{vACC+j}, v{vACC+j}, v{mn+2}')
    for j in range(8):
        A(f'    v_add_f32 v{lsum}, v{lsum}, v{vS+j}')
    for j in range(8):
        r = vR + 4 * (8 + j)
        A(f'    s_waitcnt vmcnt({7 + ex - j})')
        for k in range(4):
            A(f'    v_lshlrev_b32 v{vT+2*k}, 16, v{r+k}')
            A(f'    v_and_b32 v{vT+2*k+1}, s61, v{r+k}')
        for k in range(8):
            A(f'    v_fmac_f32 v{vACC+k}, v{vS+j}, v{vT+k}')
    A('    s_branch L_cloop')
    A('L_join:')
    A(f'    v_mov_b32 v{lsum+1}, v{lsum}')
    A('    s_nop 1')
    for j in range(4):
        A(f'    v_permlane32_swap_b32 v{vACC+j}, v{vACC+4+j}')
    A(f'    v_permlane32_swap_b32 v{lsum}, v{lsum+1}')
    A('    s_nop 1')
    for j in range(4):
        A(f'    v_add_f32 v{vACC+j}, v{vACC+j}, v{vACC+4+j}')
    A(f'    v_add_f32 v{lsum}, v{lsum}, v{lsum+1}')
    A(f'    v_mov_b32 v{lsum+1}, v{lsum}')
    A('    s_nop 1')
    A(f'    v_permlane16_swap_b32 v{vACC}, v{vACC+2}')
    A(f'    v_permlane16_swap_b32 v{vACC+1}, v{vACC+3}')
    A(f'    v_permlane16_swap_b32 v{lsum}, v{lsum+1}')
    A('    s_nop 1')
    A(f'    v_add_f32 v{vACC}, v{vACC}, v{vACC+2}')
    A(f'    v_add_f32 v{vACC+1}, v{vACC+1}, v{vACC+3}')
    A(f'    v_add_f32 v{m+1}, v{lsum}, v{lsum+1}   ; wave l  (v{m}=m, v{m+1}=l)')
    t = vT
    A(f'    v_and_b32 v{t}, 15, v3')
    A(f'    v_lshlrev_b32 v{t}, 5, v{t}          ; c*32 bytes')
    A(f'    v_lshrrev_b32 v{t+1}, 4, v3')
    A(f'    v_lshl_add_u32 v{t}, v{t+1}, 3, v{t} ; + r*8')
    A('    s_lshl_b32 s62, s19, 9')
    A(f'    v_add_u32 v{t}, s62, v{t}')
    if diag == 2:
        A('    s_memrealtime s[84:85]')
        A('    s_lshl_b32 s93, s2, 3')
        A('    s_add_u32 s93, s93, s19')
        A('    s_lshl_b32 s93, s93, 2')
        A('    s_add_u32 s93, s93, 0x110000')
        A('    s_waitcnt lgkmcnt(0)')
        A(f'    v_mov_b32 v{vR+40}, s84')
        A(f'    v_mov_b32 v{vR+41}, 0')
        A('    s_mov_b64 exec, 1')
        A(f'    buffer_store_dword v{vR+40}, v{vR+41}, s[56:59], s93 offen')
        A('    s_mov_b64 exec, -1')
    A(f'    ds_write_b64 v{t}, v[{vACC}:{vACC+1}]')
    A('    s_lshl_b32 s62, s19, 3')
    A(f'    s_add_u32 s62, s62, {lds_ml}')
    A(f'    v_mov_b32 v{t+2}, s62')
    A(f'    ds_write_b64 v{t+2}, v[{m}:{m+1}]')
    A('    s_waitcnt lgkmcnt(0)')
    A('    s_barrier')
    A('    s_cmp_lg_u32 s19, 0')
    A('    s_cbranch_scc1 L_done')
    if diag == 2:
        A('    s_memrealtime s[92:93]')
        A('    s_getreg_b32 s94, hwreg(HW_REG_XCC_ID)')
        A('    s_waitcnt lgkmcnt(0)')
        A('    s_lshl_b32 s93, s2, 4')
        A('    s_add_u32 s93, s93, 0x100000')
        A(f'    v_mov_b32 v{vR+40}, s90')
        A(f'    v_mov_b32 v{vR+41}, s92')
        A(f'    v_mov_b32 v{vR+42}, s94')
        A(f'    v_mov_b32 v{vR+43}, s88')
        A(f'    v_mov_b32 v{vT}, 0')
        A('    s_mov_b64 exec, 1')
        A(f'    buffer_store_dwordx4 v[{vR+40}:{vR+43}], v{vT}, s[56:59], s93 offen')
        A('    s_mov_b64 exec, -1')
    A(f'    v_and_b32 v{t}, {NW-1}, v3')
    A(f'    v_lshlrev_b32 v{t}, 3, v{t}')
    A(f'    ds_read_b64 v[{m}:{m+1}], v{t} offset:{lds_ml}')
    A(f'    v_lshlrev_b32 v{t+1}, 3, v3           ; lane*8')
    for w in range(NW):
        A(f'    ds_read_b64 v[{vR+2*w}:{vR+2*w+1}], v{t+1} offset:{w*512}')
    A(f'    s_waitcnt lgkmcnt({min(NW,15)})')
    M = m + 2
    A(f'    v_mov_b32 v{M}, v{m}')
    A('    s_nop 1')
    rots = [r for r in (8, 4, 2, 1) if r < NW]
    for rot in rots:
        A(f'    v_max_f32_dpp v{M}, v{M}, v{M} row_ror:{rot} row_mask:0xf bank_mask:0xf')
        A('    s_nop 1')
    F = m + 3
    A(f'    v_sub_f32 v{F}, v{m}, v{M}')
    A(f'    v_mul_f32 v{F}, s60, v{F}')
    A(f'    v_exp_f32 v{F}, v{F}')
    A('    s_nop 0')
    Lr = m + 4
    A(f'    v_mul_f32 v{Lr}, v{m+1}, v{F}')
    A('    s_nop 1')
    for rot in rots:
        A(f'    v_add_f32_dpp v{Lr}, v{Lr}, v{Lr} row_ror:{rot} row_mask:0xf bank_mask:0xf')
        A('    s_nop 1')
    for w in range(NW):
        A(f'    v_readlane_b32 s{64+w}, v{F}, {w}')
    A('    s_waitcnt lgkmcnt(0)')
    o = vACC
    assert vACC % 4 == 0
    A(f'    v_mul_f32 v{o}, s64, v{vR}')
    A(f'    v_mul_f32 v{o+1}, s64, v{vR+1}')
    for w in range(1, NW):
        A(f'    v_fmac_f32 v{o}, s{64+w}, v{vR+2*w}')
        A(f'    v_fmac_f32 v{o+1}, s{64+w}, v{vR+2*w+1}')
    A(f'    v_mov_b32 v{o+2}, v{M}')
    A(f'    v_mov_b32 v{o+3}, v{Lr}')
    A(f'    s_mul_i32 s62, s17, {NSPLIT}')
    A('    s_add_u32 s63, s62, s18')
    A('    s_lshl_b32 s63, s63, 10')
    A('    s_lshl_b32 s62, s62, 10')
    A(f'    v_lshlrev_b32 v{t}, 4, v3             ; lane*16')
    A(f'    buffer_store_dwordx4 v[{o}:{o+3}], v{t}, s[56:59], s63 offen sc0 sc1')
    A('    s_waitcnt vmcnt(0)')
    A('    s_lshl_b32 s82, 1, s81')
    A(f'    v_mov_b32 v{t+2}, s82')
    A(f'    v_mov_b32 v{t+3}, s80')
    A('    s_mov_b64 exec, 1')
    A(f'    buffer_atomic_add v{t+2}, v{t+3}, s[52:55], 0 offen sc0 sc1')
    A('    s_mov_b64 exec, -1')
    A('    s_waitcnt vmcnt(0)')
    A(f'    v_readfirstlane_b32 s83, v{t+2}')
    A('    s_nop 3')
    A('    s_lshr_b32 s83, s83, s81')
    A('    s_and_b32 s83, s83, 3')
    A(f'    s_cmp_lg_u32 s83, {NSPLIT-1}')
    A('    s_cbranch_scc1 L_done')
    for sidx in range(NSPLIT):
        A(f'    buffer_load_dwordx4 v[{vR+4*sidx}:{vR+4*sidx+3}], v{t}, s[56:59], s62 offen offset:{sidx*1024} sc0 sc1')
    A('    s_waitcnt vmcnt(0)')
    A(f'    v_max_f32 v{M}, v{vR+2}, v{vR+6}')
    for sidx in range(NSPLIT):
        A(f'    v_sub_f32 v{vR+4*sidx+2}, v{vR+4*sidx+2}, v{M}')
        A(f'    v_mul_f32 v{vR+4*sidx+2}, s60, v{vR+4*sidx+2}')
        A(f'    v_exp_f32 v{vR+4*sidx+2}, v{vR+4*sidx+2}')
    A('    s_nop 0')
    A(f'    v_mul_f32 v{o}, v{vR}, v{vR+2}')
    A(f'    v_mul_f32 v{o+1}, v{vR+1}, v{vR+2}')
    A(f'    v_mul_f32 v{o+2}, v{vR+3}, v{vR+2}')
    for sidx in range(1, NSPLIT):
        b = vR + 4 * sidx
        A(f'    v_fmac_f32 v{o}, v{b}, v{b+2}')
        A(f'    v_fmac_f32 v{o+1}, v{b+1}, v{b+2}')
        A(f'    v_fmac_f32 v{o+2}, v{b+3}, v{b+2}')
    A(f'    v_rcp_f32 v{o+2}, v{o+2}')
    A('    s_nop 0')
    A(f'    v_mul_f32 v{o}, v{o}, v{o+2}')
    A(f'    v_mul_f32 v{o+1}, v{o+1}, v{o+2}')
    A(f'    v_cvt_pk_bf16_f32 v{o}, v{o}, v{o+1}')
    A(f'    v_lshlrev_b32 v{t+1}, 2, v3')
    A(f'    buffer_store_dword v{o}, v{t+1}, s[48:51], s22 offen')
    A('L_done:')
    A('    s_endpgm')
    A('.section .rodata,"a"')
    A('.p2align 6')
    A('.amdhsa_kernel standalone__softmax_full_bidir__decode_kernel')
    nva = (nv + 7) // 8 * 8
    A(f'  .amdhsa_next_free_vgpr {nva}')
    A('  .amdhsa_next_free_sgpr 96')
    A(f'  .amdhsa_accum_offset {nva}')
    A('  .amdhsa_group_segment_fixed_size 0')
    A('  .amdhsa_kernarg_size 48')
    A('  .amdhsa_user_sgpr_count 2')
    A('  .amdhsa_user_sgpr_kernarg_segment_ptr 1')
    A('  .amdhsa_system_sgpr_workgroup_id_x 1')
    A('.end_amdhsa_kernel')
    return '\n'.join(L) + '\n'

if __name__ == '__main__':
    import argparse
    ap = argparse.ArgumentParser()
    ap.add_argument('-o', default='r.s')
    ap.add_argument('--nw', type=int, default=8)
    ap.add_argument('--d', type=int, default=16)
    ap.add_argument('--um', type=int, default=16)
    ap.add_argument('--diag', type=int, default=0)
    ap.add_argument('--pol', type=int, default=0)
    ap.add_argument('--rot', type=str, default='')
    ap.add_argument('--gu', type=int, default=4)
    ap.add_argument('--prio', type=str, default='')
    ap.add_argument('--bars', type=str, default='')
    ap.add_argument('--wprio', type=int, default=0)
    ap.add_argument('--xm', type=int, default=None)
    ap.add_argument('--y', type=int, default=0)
    ap.add_argument('--ts', type=int, default=8)
    ap.add_argument('--tb', type=int, default=0)
    ap.add_argument('--xp', type=int, default=1)
    ap.add_argument('--ncw', type=int, default=4)
    ap.add_argument('--pref', type=int, default=1)
    a = ap.parse_args()
    tl = lambda x: tuple(int(y) for y in x.split(',')) if x else ()
    open(a.o, 'w').write(gen(a.nw, a.d, a.um, True, a.diag, a.pol, tuple(int(x) for x in a.rot.split(',')) if a.rot else None, a.gu, tl(a.prio), tl(a.bars), a.wprio, a.xm, a.y, a.ts, a.tb, a.xp, a.ncw, a.pref))
```

```python
import sys, math, struct

def f2u(x):
    return struct.unpack('<I', struct.pack('<f', x))[0]

HEADER = open('standalone__softmax_full_bidir__decode.s.ref').read().split('; Override launch')[0]

def gen(NW=8, D=16, UM=16, nt=True, diag=0, pol=0, rot=None, GU=4, prio=(), bars=(), wprio=0, XM=None, Y=0, SL=8, both=0):
    NH = 128
    NSPLIT = 2
    UT = 1024 // NW
    US = (UT - UM) // 2
    assert 2 * US + UM == UT
    if XM is None:
        XM = UM
    UB = US + XM + Y
    USM = US - Y + UM - XM
    assert UB % 2 == 0 and USM % 2 == 0
    NWG = NH * NSPLIT
    C = (128 ** -0.5) * math.log2(math.e)
    L = []
    A = L.append
    ntf = ' nt' if nt else ''
    vOFF = 1
    vOF2 = 2
    vQ = 4
    vS = 8
    vACC = (vS + UB + 3) // 4 * 4
    vT = vACC + 8
    vX = vT + 8
    vR = (vX + 8 + 3) // 4 * 4
    nv = vR + 4 * D
    assert 4 * D >= 2 * NW
    lds_ml = NW * 512
    lds_role = lds_ml + NW * 8
    lds_pp = lds_role + 16
    assert lds_pp % 16 == 0
    lds = (lds_pp + 1024 + 255) // 256 * 256
    A(HEADER.rstrip('\n'))
    A('; Override launch geometry by editing the next line (default: block=256,')
    A(f'; @launch grid=({NWG},1,1) block=({NW*64},1,1) lds={lds}')
    A('.amdgcn_target "amdgcn-amd-amdhsa--gfx950"')
    A('.text')
    A('.globl standalone__softmax_full_bidir__decode_kernel')
    A('.p2align 8')
    A('.type standalone__softmax_full_bidir__decode_kernel,@function')
    A('standalone__softmax_full_bidir__decode_kernel:')
    A(f'    s_cmp_ge_u32 s2, {NWG}')
    A('    s_cbranch_scc1 L_done')
    A('    s_load_dwordx4 s[4:7], s[0:1], 0       ; q, k')
    A('    s_load_dwordx4 s[8:11], s[0:1], 16     ; v, out')
    A('    s_load_dwordx4 s[12:15], s[0:1], 32')
    if diag:
        A('    s_memrealtime s[90:91]')
    if prio:
        A(f'    s_setprio {len(prio)}')
    A('    s_and_b32 s18, s2, 1')
    A('    s_lshr_b32 s17, s2, 1               ; head')
    A('    v_lshrrev_b32 v2, 6, v0')
    A('    v_and_b32 v3, 63, v0                ; lane')
    A('    v_readfirstlane_b32 s19, v2')
    A(f'    v_and_b32 v{vT}, 15, v0')
    A(f'    v_lshlrev_b32 v{vT}, 4, v{vT}         ; (lane%16)*16')
    A('    s_lshl_b32 s20, s17, 20')
    A(f'    s_mul_i32 s21, s18, {NW*(US+UM)*1024}')
    A('    s_add_u32 s21, s20, s21')
    A(f'    s_mul_i32 s23, s19, {US*1024}')
    A('    s_add_u32 s21, s21, s23')
    A(f'    s_mul_i32 s23, s19, {UM*1024}')
    A(f'    s_add_u32 s23, s23, {NW*US*1024}')
    A('    s_add_u32 s23, s23, s20')
    A(f'    v_lshlrev_b32 v{vOFF}, 4, v3')
    A(f'    v_add_u32 v{vOF2}, s23, v{vOFF}')
    A(f'    v_add_u32 v{vOFF}, s21, v{vOFF}')
    if Y:
        A('    s_xor_b32 s36, s18, 1')
        A(f'    s_mul_i32 s36, s36, {NW*(US+UM)*1024}')
        A('    s_add_u32 s36, s36, s20')
        A(f'    s_mul_i32 s37, s19, {US*1024}')
        A('    s_add_u32 s36, s36, s37')
        A('    v_lshlrev_b32 v0, 4, v3')
        A('    v_add_u32 v0, s36, v0')
    A('    s_lshl_b32 s22, s17, 8')
    if rot:
        assert US % GU == 0
        G = US // GU
        A(f'    s_mul_i32 s36, s19, {rot[0]}')
        A(f'    s_mul_i32 s37, s17, {rot[1]}')
        A('    s_add_u32 s36, s36, s37')
        A(f'    s_mul_i32 s37, s18, {rot[2]}')
        A('    s_add_u32 s36, s36, s37')
        A(f'    s_mul_i32 s37, s36, {(1<<20)//G+1}')
        A('    s_lshr_b32 s37, s37, 20')
        A(f'    s_mul_i32 s37, s37, {G}')
        A('    s_sub_u32 s36, s36, s37')
        A(f'    s_mul_i32 s36, s36, {GU*1024}')
    if wprio:
        A('    s_lshr_b32 s36, s19, 1')
        for p in (1, 2, 3):
            A(f'    s_cmp_lg_u32 s36, {p}')
            A(f'    s_cbranch_scc1 L_wp{p}')
            A(f'    s_setprio {p}')
            A(f'L_wp{p}:')
    A('    s_lshr_b32 s80, s17, 1')
    A('    s_lshl_b32 s80, s80, 2')
    A('    s_and_b32 s81, s17, 1')
    A('    s_lshl_b32 s81, s81, 4              ; shift')
    A('    s_getreg_b32 s86, hwreg(HW_REG_XCC_ID)')
    A('    s_and_b32 s86, s86, 1')
    if pol == 0:
        A('    s_xor_b32 s86, s86, 1')
    A('    s_waitcnt lgkmcnt(0)')
    A('    s_mov_b32 s24, s6')
    A('    s_mov_b32 s25, s7')
    A('    s_mov_b32 s26, 0x8000000')
    A('    s_mov_b32 s27, 0x00020000           ; K srd s[24:27]')
    A('    s_mov_b32 s28, s8')
    A('    s_mov_b32 s29, s9')
    A('    s_mov_b32 s30, 0x8000000')
    A('    s_mov_b32 s31, 0x00020000           ; V srd s[28:31]')
    A('    s_mov_b32 s32, s4')
    A('    s_mov_b32 s33, s5')
    A('    s_mov_b32 s34, 0x8000')
    A('    s_mov_b32 s35, 0x00020000           ; Q srd s[32:35]')
    A('    s_mov_b32 s52, s12')
    A('    s_mov_b32 s53, s13')
    A('    s_mov_b32 s54, 256')
    A('    s_mov_b32 s55, 0x00020000')
    A('    s_cmp_lg_u32 s19, 0')
    A('    s_cbranch_scc1 L_norole')
    A('    s_lshl_b32 s82, s86, 9')
    A('    s_add_u32 s82, s82, 0x100')
    A('    s_lshl_b32 s82, s82, s81')
    A(f'    v_mov_b32 v{vX+6}, s82')
    A(f'    v_mov_b32 v{vX+7}, s80')
    A('    s_mov_b64 exec, 1')
    A(f'    buffer_atomic_add v{vX+6}, v{vX+7}, s[52:55], 0 offen sc0 sc1')
    A('    s_mov_b64 exec, -1')
    A('L_norole:')
    A(f'    buffer_load_dwordx4 v[{vQ}:{vQ+3}], v{vT}, s[32:35], s22 offen')
    def mk(kind, big):
        if big:
            return [(kind, vOFF, u) for u in range(US)] + [(kind, vOF2, u) for u in range(XM)] + \
                   [(kind, 0, u) for u in range(US - Y, US)]
        return [(kind, vOFF, u) for u in range(US - Y)] + [(kind, vOF2, u) for u in range(XM, UM)]
    seqS = mk('K', 0) + mk('V', 0)
    seqB = mk('K', 1) + mk('V', 1)
    def issue(seq, i):
        kind, vo, u = seq[i]
        srd = 's[24:27]' if kind == 'K' else 's[28:31]'
        off = u * 1024
        r = vR + 4 * (i % D)
        if rot and vo == vOFF:
            g = u // GU
            sc = 40 + (g % 8)
            sp = 40 + ((g - 1) % 8)
            if u % GU == 0:
                if g == 0:
                    A(f'    s_mov_b32 s{sc}, s36')
                else:
                    A(f'    s_add_u32 s{sc}, s{sp}, {GU*1024}')
                    A(f'    s_cmp_ge_u32 s{sc}, {US*1024}')
                    A(f'    s_cselect_b32 s{sc}, 0, s{sc}')
            A(f'    buffer_load_dwordx4 v[{r}:{r+3}], v{vo}, {srd}, s{sc} offen offset:{(u%GU)*1024}{ntf}')
            return
        imm = off % 4096
        so = off - imm
        sreg = (64 if rot else 40) + (i % 8)
        if so == 0:
            A(f'    buffer_load_dwordx4 v[{r}:{r+3}], v{vo}, {srd}, 0 offen offset:{imm}{ntf}')
        else:
            A(f'    s_mov_b32 s{sreg}, {so}')
            A(f'    buffer_load_dwordx4 v[{r}:{r+3}], v{vo}, {srd}, s{sreg} offen offset:{imm}{ntf}')
    for i in range(D):
        issue(seqS, i)
    A('    s_mov_b32 s48, s10')
    A('    s_mov_b32 s49, s11')
    A('    s_mov_b32 s50, 0x8000')
    A('    s_mov_b32 s51, 0x00020000')
    A('    s_mov_b32 s56, s14')
    A('    s_mov_b32 s57, s15')
    A(f'    s_mov_b32 s58, {NWG*1024 if diag != 2 else 0x200000}')
    A('    s_mov_b32 s59, 0x00020000')
    A(f'    s_mov_b32 s60, 0x{f2u(C):08x}       ; scale*log2e')
    A('    s_mov_b32 s61, 0xffff0000')
    for j in range(8):
        A(f'    v_mov_b32 v{vACC+j}, 0')
    A(f'    v_mov_b32 v{vX+5}, {lds_role}')
    A('    s_cmp_lg_u32 s19, 0')
    A('    s_cbranch_scc1 L_rolebar')
    A(f'    s_waitcnt vmcnt({D+1})')
    A(f'    v_readfirstlane_b32 s83, v{vX+6}')
    A('    s_nop 3')
    A('    s_lshr_b32 s83, s83, s81')
    A('    s_lshr_b32 s83, s83, 8')
    A('    s_and_b32 s83, s83, 3')
    A('    s_lshr_b32 s87, s83, 1')
    A('    s_xor_b32 s87, s87, 1')
    A('    s_cmp_eq_u32 s83, 0')
    A('    s_cselect_b32 s87, s86, s87')
    A(f'    v_mov_b32 v{vX+6}, s87')
    A(f'    ds_write_b32 v{vX+5}, v{vX+6}')
    A(f'    ds_write_b32 v{vX+5}, v{vACC} offset:4')
    A(f'    ds_write_b32 v{vX+5}, v{vACC} offset:8')
    A('    s_waitcnt lgkmcnt(0)')
    A('L_rolebar:')
    A('    s_barrier')
    A(f'    ds_read_b32 v{vX+6}, v{vX+5}')
    state = {'pend': []}
    def dpp_flush(force=False):
        p = state['pend']
        if not p:
            return
        for rot in (8, 4, 2, 1):
            for u in p:
                A(f'    v_add_f32_dpp v{vS+u}, v{vS+u}, v{vS+u} row_ror:{rot} row_mask:0xf bank_mask:0xf')
            if len(p) < 3:
                A('    s_nop 1')
        state['pend'] = []
    def gate(seq, i):
        rem = len(seq) - i
        if i >= US - D:
            if rem in prio:
                A(f'    s_setprio {len(prio) - 1 - prio.index(rem)}')
            if rem in bars:
                A('    s_barrier')
    def kstep(seq, i):
        NL = len(seq)
        gate(seq, i)
        A(f'    s_waitcnt vmcnt({min(D-1, NL-1-i)})')
        r = vR + 4 * (i % D)
        A(f'    v_dot2_f32_bf16 v{vS+i}, v{r}, v{vQ}, 0')
        for j in range(1, 4):
            A(f'    v_dot2_f32_bf16 v{vS+i}, v{r+j}, v{vQ+j}, v{vS+i}')
        if i + D < NL:
            issue(seq, i + D)
        if len(state['pend']) >= 4:
            dpp_flush()
        state['pend'].append(i)
    m = vX
    lsum = m + 2
    def tail(seq, i0, U):
        NL = len(seq)
        for i in range(i0, U):
            kstep(seq, i)
        A('    s_nop 3')
        dpp_flush()
        if diag == 2:
            A('    s_memrealtime s[88:89]')
        A(f'    v_max3_f32 v{m}, v{vS}, v{vS+1}, v{vS+2}')
        k = 3
        while k + 1 < U:
            A(f'    v_max3_f32 v{m}, v{m}, v{vS+k}, v{vS+k+1}')
            k += 2
        if k < U:
            A(f'    v_max_f32 v{m}, v{m}, v{vS+k}')
        A(f'    v_mov_b32 v{m+1}, v{m}')
        A('    s_nop 1')
        A(f'    v_permlane32_swap_b32 v{m}, v{m+1}')
        A('    s_nop 1')
        A(f'    v_max_f32 v{m}, v{m}, v{m+1}')
        A(f'    v_mov_b32 v{m+1}, v{m}')
        A('    s_nop 1')
        A(f'    v_permlane16_swap_b32 v{m}, v{m+1}')
        A('    s_nop 1')
        A(f'    v_max_f32 v{m}, v{m}, v{m+1}')
        A(f'    v_mul_f32 v{m+1}, s60, v{m}')
        for u in range(U):
            A(f'    v_fma_f32 v{vS+u}, v{vS+u}, s60, -v{m+1}')
        for u in range(U):
            A(f'    v_exp_f32 v{vS+u}, v{vS+u}')
        A('    s_nop 0')
        A(f'    v_add_f32 v{lsum}, v{vS}, v{vS+1}')
        A(f'    v_add_f32 v{lsum+1}, v{vS+2}, v{vS+3}')
        for u in range(4, U, 2):
            A(f'    v_add_f32 v{lsum}, v{lsum}, v{vS+u}')
            A(f'    v_add_f32 v{lsum+1}, v{lsum+1}, v{vS+u+1}')
        A(f'    v_add_f32 v{lsum}, v{lsum}, v{lsum+1}')
        for i in range(U, NL):
            u = i - U
            gate(seq, i)
            A(f'    s_waitcnt vmcnt({min(D-1, NL-1-i)})')
            r = vR + 4 * (i % D)
            for j in range(4):
                A(f'    v_lshlrev_b32 v{vT+2*j}, 16, v{r+j}')
                A(f'    v_and_b32 v{vT+2*j+1}, s61, v{r+j}')
            if i + D < NL:
                issue(seq, i + D)
            for j in range(8):
                A(f'    v_fmac_f32 v{vACC+j}, v{vS+u}, v{vT+j}')
    i0 = US - Y - D
    for i in range(i0):
        kstep(seqS, i)
    A('    s_waitcnt lgkmcnt(0)')
    A(f'    v_readfirstlane_b32 s87, v{vX+6}')
    A('    s_nop 3')
    if UM:
        A('    s_cmp_lg_u32 s87, 0')
        A('    s_cbranch_scc1 L_big')
    saved = list(state['pend'])
    tail(seqS, i0, USM)
    if UM:
        A('    s_branch L_join')
        A('L_big:')
        state['pend'] = saved
        tail(seqB, i0, UB)
    A('L_join:')
    A(f'    v_mov_b32 v{lsum+1}, v{lsum}')
    A('    s_nop 1')
    for j in range(4):
        A(f'    v_permlane32_swap_b32 v{vACC+j}, v{vACC+4+j}')
    A(f'    v_permlane32_swap_b32 v{lsum}, v{lsum+1}')
    A('    s_nop 1')
    for j in range(4):
        A(f'    v_add_f32 v{vACC+j}, v{vACC+j}, v{vACC+4+j}')
    A(f'    v_add_f32 v{lsum}, v{lsum}, v{lsum+1}')
    A(f'    v_mov_b32 v{lsum+1}, v{lsum}')
    A('    s_nop 1')
    A(f'    v_permlane16_swap_b32 v{vACC}, v{vACC+2}')
    A(f'    v_permlane16_swap_b32 v{vACC+1}, v{vACC+3}')
    A(f'    v_permlane16_swap_b32 v{lsum}, v{lsum+1}')
    A('    s_nop 1')
    A(f'    v_add_f32 v{vACC}, v{vACC}, v{vACC+2}')
    A(f'    v_add_f32 v{vACC+1}, v{vACC+1}, v{vACC+3}')
    A(f'    v_add_f32 v{m+1}, v{lsum}, v{lsum+1}   ; wave l  (v{m}=m, v{m+1}=l)')
    t = vT
    A(f'    v_and_b32 v{t}, 15, v3')
    A(f'    v_lshlrev_b32 v{t}, 5, v{t}          ; c*32 bytes')
    A(f'    v_lshrrev_b32 v{t+1}, 4, v3')
    A(f'    v_lshl_add_u32 v{t}, v{t+1}, 3, v{t} ; + r*8')
    A('    s_lshl_b32 s62, s19, 9')
    A(f'    v_add_u32 v{t}, s62, v{t}')
    if diag == 2:
        A('    s_memrealtime s[84:85]')
        A('    s_lshl_b32 s93, s2, 3')
        A('    s_add_u32 s93, s93, s19')
        A('    s_lshl_b32 s93, s93, 2')
        A('    s_add_u32 s93, s93, 0x110000')
        A('    s_waitcnt lgkmcnt(0)')
        A(f'    v_mov_b32 v{vR+40}, s84')
        A(f'    v_mov_b32 v{vR+41}, 0')
        A('    s_mov_b64 exec, 1')
        A(f'    buffer_store_dword v{vR+40}, v{vR+41}, s[56:59], s93 offen')
        A('    s_mov_b64 exec, -1')
    A(f'    ds_write_b64 v{t}, v[{vACC}:{vACC+1}]')
    A('    s_lshl_b32 s62, s19, 3')
    A(f'    s_add_u32 s62, s62, {lds_ml}')
    A(f'    v_mov_b32 v{t+2}, s62')
    A(f'    ds_write_b64 v{t+2}, v[{m}:{m+1}]')
    A(f'    v_mov_b32 v{t+3}, 1')
    A('    s_waitcnt lgkmcnt(0)')
    A('    s_mov_b64 exec, 1')
    A(f'    ds_add_u32 v{vX+5}, v{t+3} offset:4')
    A('    s_mov_b64 exec, -1')
    A('    s_cmp_eq_u32 s19, 0')
    A('    s_cbranch_scc1 L_w0')
    A('    s_waitcnt lgkmcnt(0)')
    A('    s_cmp_lg_u32 s19, 1')
    A('    s_cbranch_scc1 L_done')
    if not both:
        A('    s_cmp_eq_u32 s87, 0')
        A('    s_cbranch_scc1 L_done')
    A(f'    v_mov_b32 v{t+2}, s80')
    A('L_poll:')
    A(f'    buffer_load_dword v{t}, v{t+2}, s[52:55], 0 offen sc0 sc1')
    A(f'    ds_read_b32 v{t+1}, v{vX+5} offset:4')
    A('    s_waitcnt vmcnt(0) lgkmcnt(0)')
    A(f'    v_readfirstlane_b32 s83, v{t}')
    A(f'    v_readfirstlane_b32 s84, v{t+1}')
    A('    s_nop 3')
    A(f'    s_cmp_ge_u32 s84, {NW}')
    A('    s_cbranch_scc1 L_done')
    A('    s_lshr_b32 s83, s83, s81')
    A('    s_and_b32 s83, s83, 0xff')
    A('    s_cmp_lg_u32 s83, 0')
    A('    s_cbranch_scc1 L_got')
    A(f'    s_sleep {SL}')
    A('    s_branch L_poll')
    A('L_got:')
    A('    s_xor_b32 s63, s18, 1')
    A('    s_lshl_b32 s62, s17, 1')
    A('    s_add_u32 s63, s63, s62')
    A('    s_lshl_b32 s63, s63, 10')
    A(f'    v_lshlrev_b32 v{t}, 4, v3')
    A(f'    buffer_load_dwordx4 v[{vR}:{vR+3}], v{t}, s[56:59], s63 offen sc0 sc1')
    A('    s_waitcnt vmcnt(0)')
    A(f'    ds_write_b128 v{t}, v[{vR}:{vR+3}] offset:{lds_pp}')
    A('    s_waitcnt lgkmcnt(0)')
    A(f'    ds_write_b32 v{vX+5}, v{t+3} offset:8')
    A('    s_waitcnt lgkmcnt(0)')
    A('    s_branch L_done')
    A('L_w0:')
    A(f'    ds_read_b32 v{t+1}, v{vX+5} offset:4')
    A('    s_waitcnt lgkmcnt(0)')
    A(f'    v_readfirstlane_b32 s84, v{t+1}')
    A('    s_nop 3')
    A(f'    s_cmp_ge_u32 s84, {NW}')
    A('    s_cbranch_scc1 L_w0go')
    A('    s_sleep 1')
    A('    s_branch L_w0')
    A('L_w0go:')
    if diag == 2:
        A('    s_memrealtime s[92:93]')
        A('    s_getreg_b32 s94, hwreg(HW_REG_XCC_ID)')
        A('    s_waitcnt lgkmcnt(0)')
        A('    s_lshl_b32 s93, s2, 4')
        A('    s_add_u32 s93, s93, 0x100000')
        A(f'    v_mov_b32 v{vR+40}, s90')
        A(f'    v_mov_b32 v{vR+41}, s92')
        A(f'    v_mov_b32 v{vR+42}, s94')
        A(f'    v_mov_b32 v{vR+43}, s88')
        A(f'    v_mov_b32 v{vT}, 0')
        A('    s_mov_b64 exec, 1')
        A(f'    buffer_store_dwordx4 v[{vR+40}:{vR+43}], v{vT}, s[56:59], s93 offen')
        A('    s_mov_b64 exec, -1')
    A(f'    v_and_b32 v{t}, {NW-1}, v3')
    A(f'    v_lshlrev_b32 v{t}, 3, v{t}')
    A(f'    ds_read_b64 v[{m}:{m+1}], v{t} offset:{lds_ml}')
    A(f'    v_lshlrev_b32 v{t+1}, 3, v3           ; lane*8')
    for w in range(NW):
        A(f'    ds_read_b64 v[{vR+2*w}:{vR+2*w+1}], v{t+1} offset:{w*512}')
    A(f'    s_waitcnt lgkmcnt({min(NW,15)})')
    M = m + 2
    A(f'    v_mov_b32 v{M}, v{m}')
    A('    s_nop 1')
    rots = [r for r in (8, 4, 2, 1) if r < NW]
    for rot in rots:
        A(f'    v_max_f32_dpp v{M}, v{M}, v{M} row_ror:{rot} row_mask:0xf bank_mask:0xf')
        A('    s_nop 1')
    F = m + 3
    A(f'    v_sub_f32 v{F}, v{m}, v{M}')
    A(f'    v_mul_f32 v{F}, s60, v{F}')
    A(f'    v_exp_f32 v{F}, v{F}')
    A('    s_nop 0')
    Lr = m + 4
    A(f'    v_mul_f32 v{Lr}, v{m+1}, v{F}')
    A('    s_nop 1')
    for rot in rots:
        A(f'    v_add_f32_dpp v{Lr}, v{Lr}, v{Lr} row_ror:{rot} row_mask:0xf bank_mask:0xf')
        A('    s_nop 1')
    for w in range(NW):
        A(f'    v_readlane_b32 s{64+w}, v{F}, {w}')
    A('    s_waitcnt lgkmcnt(0)')
    o = vACC
    assert vACC % 4 == 0
    A(f'    v_mul_f32 v{o}, s64, v{vR}')
    A(f'    v_mul_f32 v{o+1}, s64, v{vR+1}')
    for w in range(1, NW):
        A(f'    v_fmac_f32 v{o}, s{64+w}, v{vR+2*w}')
        A(f'    v_fmac_f32 v{o+1}, s{64+w}, v{vR+2*w+1}')
    A(f'    v_mov_b32 v{o+2}, v{M}')
    A(f'    v_mov_b32 v{o+3}, v{Lr}')
    A(f'    ds_read_b32 v{t+1}, v{vX+5} offset:8')
    A(f'    v_lshlrev_b32 v{t}, 4, v3             ; lane*16')
    A('    s_waitcnt lgkmcnt(0)')
    A(f'    v_readfirstlane_b32 s84, v{t+1}')
    A('    s_nop 3')
    A('    s_cmp_eq_u32 s84, 0')
    A('    s_cbranch_scc1 L_pub')
    A(f'    ds_read_b128 v[{vR+4}:{vR+7}], v{t} offset:{lds_pp}')
    for j in range(4):
        A(f'    v_mov_b32 v{vR+j}, v{o+j}')
    A('    s_waitcnt lgkmcnt(0)')
    A('    s_branch L_fin')
    A('L_pub:')
    A(f'    s_mul_i32 s62, s17, {NSPLIT}')
    A('    s_add_u32 s63, s62, s18')
    A('    s_lshl_b32 s63, s63, 10')
    A('    s_lshl_b32 s62, s62, 10')
    A(f'    v_lshlrev_b32 v{t}, 4, v3             ; lane*16')
    A(f'    buffer_store_dwordx4 v[{o}:{o+3}], v{t}, s[56:59], s63 offen sc0 sc1')
    A('    s_waitcnt vmcnt(0)')
    A('    s_lshl_b32 s82, 1, s81')
    A(f'    v_mov_b32 v{t+2}, s82')
    A(f'    v_mov_b32 v{t+3}, s80')
    A('    s_mov_b64 exec, 1')
    A(f'    buffer_atomic_add v{t+2}, v{t+3}, s[52:55], 0 offen sc0 sc1')
    A('    s_mov_b64 exec, -1')
    A('    s_waitcnt vmcnt(0)')
    A(f'    v_readfirstlane_b32 s83, v{t+2}')
    A('    s_nop 3')
    A('    s_lshr_b32 s83, s83, s81')
    A('    s_and_b32 s83, s83, 0xff')
    A(f'    s_cmp_lg_u32 s83, {NSPLIT-1}')
    A('    s_cbranch_scc1 L_done')
    for sidx in range(NSPLIT):
        A(f'    buffer_load_dwordx4 v[{vR+4*sidx}:{vR+4*sidx+3}], v{t}, s[56:59], s62 offen offset:{sidx*1024} sc0 sc1')
    A('    s_waitcnt vmcnt(0)')
    A('L_fin:')
    A(f'    v_max_f32 v{M}, v{vR+2}, v{vR+6}')
    for sidx in range(NSPLIT):
        A(f'    v_sub_f32 v{vR+4*sidx+2}, v{vR+4*sidx+2}, v{M}')
        A(f'    v_mul_f32 v{vR+4*sidx+2}, s60, v{vR+4*sidx+2}')
        A(f'    v_exp_f32 v{vR+4*sidx+2}, v{vR+4*sidx+2}')
    A('    s_nop 0')
    A(f'    v_mul_f32 v{o}, v{vR}, v{vR+2}')
    A(f'    v_mul_f32 v{o+1}, v{vR+1}, v{vR+2}')
    A(f'    v_mul_f32 v{o+2}, v{vR+3}, v{vR+2}')
    for sidx in range(1, NSPLIT):
        b = vR + 4 * sidx
        A(f'    v_fmac_f32 v{o}, v{b}, v{b+2}')
        A(f'    v_fmac_f32 v{o+1}, v{b+1}, v{b+2}')
        A(f'    v_fmac_f32 v{o+2}, v{b+3}, v{b+2}')
    A(f'    v_rcp_f32 v{o+2}, v{o+2}')
    A('    s_nop 0')
    A(f'    v_mul_f32 v{o}, v{o}, v{o+2}')
    A(f'    v_mul_f32 v{o+1}, v{o+1}, v{o+2}')
    A(f'    v_cvt_pk_bf16_f32 v{o}, v{o}, v{o+1}')
    A(f'    v_lshlrev_b32 v{t+1}, 2, v3')
    A(f'    buffer_store_dword v{o}, v{t+1}, s[48:51], s22 offen')
    A('L_done:')
    A('    s_endpgm')
    A('.section .rodata,"a"')
    A('.p2align 6')
    A('.amdhsa_kernel standalone__softmax_full_bidir__decode_kernel')
    nva = (nv + 7) // 8 * 8
    A(f'  .amdhsa_next_free_vgpr {nva}')
    A('  .amdhsa_next_free_sgpr 96')
    A(f'  .amdhsa_accum_offset {nva}')
    A('  .amdhsa_group_segment_fixed_size 0')
    A('  .amdhsa_kernarg_size 48')
    A('  .amdhsa_user_sgpr_count 2')
    A('  .amdhsa_user_sgpr_kernarg_segment_ptr 1')
    A('  .amdhsa_system_sgpr_workgroup_id_x 1')
    A('.end_amdhsa_kernel')
    return '\n'.join(L) + '\n'

if __name__ == '__main__':
    import argparse
    ap = argparse.ArgumentParser()
    ap.add_argument('-o', default='r.s')
    ap.add_argument('--nw', type=int, default=8)
    ap.add_argument('--d', type=int, default=16)
    ap.add_argument('--um', type=int, default=16)
    ap.add_argument('--diag', type=int, default=0)
    ap.add_argument('--pol', type=int, default=0)
    ap.add_argument('--rot', type=str, default='')
    ap.add_argument('--gu', type=int, default=4)
    ap.add_argument('--prio', type=str, default='')
    ap.add_argument('--bars', type=str, default='')
    ap.add_argument('--wprio', type=int, default=0)
    ap.add_argument('--xm', type=int, default=None)
    ap.add_argument('--y', type=int, default=0)
    ap.add_argument('--sl', type=int, default=8)
    ap.add_argument('--both', type=int, default=0)
    a = ap.parse_args()
    tl = lambda x: tuple(int(y) for y in x.split(',')) if x else ()
    open(a.o, 'w').write(gen(a.nw, a.d, a.um, True, a.diag, a.pol, tuple(int(x) for x in a.rot.split(',')) if a.rot else None, a.gu, tl(a.prio), tl(a.bars), a.wprio, a.xm, a.y, a.sl, a.both))
```

```python
import sys, math, struct

def f2u(x):
    return struct.unpack('<I', struct.pack('<f', x))[0]

HEADER = open('standalone__softmax_full_bidir__decode.s.ref').read().split('; Override launch')[0]

def gen(NW=8, D=16, UM=16, nt=True, diag=0, pol=0, rot=None, GU=4, prio=(), bars=(), wprio=0, XM=None, Y=0, lay=0, perm=0, il=0):
    NH = 128
    NSPLIT = 2
    UT = 1024 // NW
    US = (UT - UM) // 2
    assert 2 * US + UM == UT
    if XM is None:
        XM = UM
    UB = US + XM + Y
    USM = US - Y + UM - XM
    assert UB % 2 == 0 and USM % 2 == 0
    NWG = NH * NSPLIT
    C = (128 ** -0.5) * math.log2(math.e)
    L = []
    A = L.append
    ntf = ' nt' if nt else ''
    vOFF = 1
    vOF2 = 2
    vQ = 4
    vS = 8
    vACC = (vS + UB + 3) // 4 * 4
    vT = vACC + 8
    vX = vT + 8
    vR = (vX + 8 + 3) // 4 * 4
    nv = vR + 4 * D
    assert 4 * D >= 2 * NW
    lds_ml = NW * 512
    lds_role = lds_ml + NW * 8
    lds = (lds_role + 4 + 255) // 256 * 256
    A(HEADER.rstrip('\n'))
    A('; Override launch geometry by editing the next line (default: block=256,')
    A(f'; @launch grid=({NWG},1,1) block=({NW*64},1,1) lds={lds}')
    A('.amdgcn_target "amdgcn-amd-amdhsa--gfx950"')
    A('.text')
    A('.globl standalone__softmax_full_bidir__decode_kernel')
    A('.p2align 8')
    A('.type standalone__softmax_full_bidir__decode_kernel,@function')
    A('standalone__softmax_full_bidir__decode_kernel:')
    A(f'    s_cmp_ge_u32 s2, {NWG}')
    A('    s_cbranch_scc1 L_done')
    A('    s_load_dwordx4 s[4:7], s[0:1], 0       ; q, k')
    A('    s_load_dwordx4 s[8:11], s[0:1], 16     ; v, out')
    A('    s_load_dwordx4 s[12:15], s[0:1], 32')
    if diag:
        A('    s_memrealtime s[90:91]')
    if prio:
        A(f'    s_setprio {len(prio)}')
    A('    s_and_b32 s18, s2, 1')
    A('    s_lshr_b32 s17, s2, 1               ; head')
    A('    v_lshrrev_b32 v2, 6, v0')
    A('    v_and_b32 v3, 63, v0                ; lane')
    A('    v_readfirstlane_b32 s19, v2')
    A(f'    v_and_b32 v{vT}, 15, v0')
    A(f'    v_lshlrev_b32 v{vT}, 4, v{vT}         ; (lane%16)*16')
    A('    s_lshl_b32 s20, s17, 20')
    assert not (Y and (lay or perm))
    sideoff, midoff, base = [(NW*(US+UM), NW*US, 0), (NW*US, 2*NW*US, 0), (NW*US, 0, NW*UM)][lay]
    rw = 's19'
    if perm:
        A('    s_and_b32 s38, s19, 3')
        A('    s_lshl_b32 s38, s38, 1')
        A('    s_lshr_b32 s39, s19, 2')
        A('    s_or_b32 s38, s38, s39')
        rw = 's38'
    A(f'    s_mul_i32 s21, s18, {sideoff*1024}')
    A('    s_add_u32 s21, s20, s21')
    if base:
        A(f'    s_add_u32 s21, s21, {base*1024}')
    if il:
        assert US % 4 == 0 and not Y and not rot
        A('    s_lshr_b32 s38, s19, 2')
        A(f'    s_mul_i32 s23, s38, {4*US*1024}')
        A('    s_and_b32 s38, s19, 3')
        if il == 2:
            A('    s_xor_b32 s38, s38, 3')
        A('    s_lshl_b32 s38, s38, 12')
        A('    s_add_u32 s23, s23, s38')
    else:
        A(f'    s_mul_i32 s23, {rw}, {US*1024}')
    A('    s_add_u32 s21, s21, s23')
    A(f'    s_mul_i32 s23, {rw}, {UM*1024}')
    A(f'    s_add_u32 s23, s23, {midoff*1024}')
    A('    s_add_u32 s23, s23, s20')
    A(f'    v_lshlrev_b32 v{vOFF}, 4, v3')
    A(f'    v_add_u32 v{vOF2}, s23, v{vOFF}')
    A(f'    v_add_u32 v{vOFF}, s21, v{vOFF}')
    if Y:
        A('    s_xor_b32 s36, s18, 1')
        A(f'    s_mul_i32 s36, s36, {NW*(US+UM)*1024}')
        A('    s_add_u32 s36, s36, s20')
        A(f'    s_mul_i32 s37, s19, {US*1024}')
        A('    s_add_u32 s36, s36, s37')
        A('    v_lshlrev_b32 v0, 4, v3')
        A('    v_add_u32 v0, s36, v0')
    A('    s_lshl_b32 s22, s17, 8')
    if rot:
        assert US % GU == 0
        G = US // GU
        A(f'    s_mul_i32 s36, s19, {rot[0]}')
        A(f'    s_mul_i32 s37, s17, {rot[1]}')
        A('    s_add_u32 s36, s36, s37')
        A(f'    s_mul_i32 s37, s18, {rot[2]}')
        A('    s_add_u32 s36, s36, s37')
        A(f'    s_mul_i32 s37, s36, {(1<<20)//G+1}')
        A('    s_lshr_b32 s37, s37, 20')
        A(f'    s_mul_i32 s37, s37, {G}')
        A('    s_sub_u32 s36, s36, s37')
        A(f'    s_mul_i32 s36, s36, {GU*1024}')
    if wprio:
        A('    s_lshr_b32 s36, s19, 1')
        for p in (1, 2, 3):
            A(f'    s_cmp_lg_u32 s36, {p}')
            A(f'    s_cbranch_scc1 L_wp{p}')
            A(f'    s_setprio {p}')
            A(f'L_wp{p}:')
    A('    s_lshr_b32 s80, s17, 1')
    A('    s_lshl_b32 s80, s80, 2')
    A('    s_and_b32 s81, s17, 1')
    A('    s_lshl_b32 s81, s81, 4              ; shift')
    A('    s_getreg_b32 s86, hwreg(HW_REG_XCC_ID)')
    A('    s_and_b32 s86, s86, 1')
    if pol == 0:
        A('    s_xor_b32 s86, s86, 1')
    A('    s_waitcnt lgkmcnt(0)')
    A('    s_mov_b32 s24, s6')
    A('    s_mov_b32 s25, s7')
    A('    s_mov_b32 s26, 0x8000000')
    A('    s_mov_b32 s27, 0x00020000           ; K srd s[24:27]')
    A('    s_mov_b32 s28, s8')
    A('    s_mov_b32 s29, s9')
    A('    s_mov_b32 s30, 0x8000000')
    A('    s_mov_b32 s31, 0x00020000           ; V srd s[28:31]')
    A('    s_mov_b32 s32, s4')
    A('    s_mov_b32 s33, s5')
    A('    s_mov_b32 s34, 0x8000')
    A('    s_mov_b32 s35, 0x00020000           ; Q srd s[32:35]')
    A('    s_mov_b32 s52, s12')
    A('    s_mov_b32 s53, s13')
    A('    s_mov_b32 s54, 256')
    A('    s_mov_b32 s55, 0x00020000')
    A('    s_cmp_lg_u32 s19, 0')
    A('    s_cbranch_scc1 L_norole')
    A('    s_lshl_b32 s82, s86, 9')
    A('    s_add_u32 s82, s82, 0x100')
    A('    s_lshl_b32 s82, s82, s81')
    A(f'    v_mov_b32 v{vX+6}, s82')
    A(f'    v_mov_b32 v{vX+7}, s80')
    A('    s_mov_b64 exec, 1')
    A(f'    buffer_atomic_add v{vX+6}, v{vX+7}, s[52:55], 0 offen sc0 sc1')
    A('    s_mov_b64 exec, -1')
    A('L_norole:')
    A(f'    buffer_load_dwordx4 v[{vQ}:{vQ+3}], v{vT}, s[32:35], s22 offen')
    def mk(kind, big):
        if big:
            return [(kind, vOFF, u) for u in range(US)] + [(kind, vOF2, u) for u in range(XM)] + \
                   [(kind, 0, u) for u in range(US - Y, US)]
        return [(kind, vOFF, u) for u in range(US - Y)] + [(kind, vOF2, u) for u in range(XM, UM)]
    seqS = mk('K', 0) + mk('V', 0)
    seqB = mk('K', 1) + mk('V', 1)
    def issue(seq, i):
        kind, vo, u = seq[i]
        srd = 's[24:27]' if kind == 'K' else 's[28:31]'
        off = u * 1024
        if il and vo == vOFF:
            off = (u // 4) * 16384 + (u % 4) * 1024
        r = vR + 4 * (i % D)
        if rot and vo == vOFF:
            g = u // GU
            sc = 40 + (g % 8)
            sp = 40 + ((g - 1) % 8)
            if u % GU == 0:
                if g == 0:
                    A(f'    s_mov_b32 s{sc}, s36')
                else:
                    A(f'    s_add_u32 s{sc}, s{sp}, {GU*1024}')
                    A(f'    s_cmp_ge_u32 s{sc}, {US*1024}')
                    A(f'    s_cselect_b32 s{sc}, 0, s{sc}')
            A(f'    buffer_load_dwordx4 v[{r}:{r+3}], v{vo}, {srd}, s{sc} offen offset:{(u%GU)*1024}{ntf}')
            return
        imm = off % 4096
        so = off - imm
        sreg = (64 if rot else 40) + (i % 8)
        if so == 0:
            A(f'    buffer_load_dwordx4 v[{r}:{r+3}], v{vo}, {srd}, 0 offen offset:{imm}{ntf}')
        else:
            A(f'    s_mov_b32 s{sreg}, {so}')
            A(f'    buffer_load_dwordx4 v[{r}:{r+3}], v{vo}, {srd}, s{sreg} offen offset:{imm}{ntf}')
    for i in range(D):
        issue(seqS, i)
    A('    s_mov_b32 s48, s10')
    A('    s_mov_b32 s49, s11')
    A('    s_mov_b32 s50, 0x8000')
    A('    s_mov_b32 s51, 0x00020000')
    A('    s_mov_b32 s56, s14')
    A('    s_mov_b32 s57, s15')
    A(f'    s_mov_b32 s58, {NWG*1024 if diag != 2 else 0x200000}')
    A('    s_mov_b32 s59, 0x00020000')
    A(f'    s_mov_b32 s60, 0x{f2u(C):08x}       ; scale*log2e')
    A('    s_mov_b32 s61, 0xffff0000')
    for j in range(8):
        A(f'    v_mov_b32 v{vACC+j}, 0')
    A(f'    v_mov_b32 v{vX+5}, {lds_role}')
    A('    s_cmp_lg_u32 s19, 0')
    A('    s_cbranch_scc1 L_rolebar')
    A(f'    s_waitcnt vmcnt({D+1})')
    A(f'    v_readfirstlane_b32 s83, v{vX+6}')
    A('    s_nop 3')
    A('    s_lshr_b32 s83, s83, s81')
    A('    s_lshr_b32 s83, s83, 8')
    A('    s_and_b32 s83, s83, 3')
    A('    s_lshr_b32 s87, s83, 1')
    A('    s_xor_b32 s87, s87, 1')
    A('    s_cmp_eq_u32 s83, 0')
    A('    s_cselect_b32 s87, s86, s87')
    A(f'    v_mov_b32 v{vX+6}, s87')
    A(f'    ds_write_b32 v{vX+5}, v{vX+6}')
    A('    s_waitcnt lgkmcnt(0)')
    A('L_rolebar:')
    A('    s_barrier')
    A(f'    ds_read_b32 v{vX+6}, v{vX+5}')
    state = {'pend': []}
    def dpp_flush(force=False):
        p = state['pend']
        if not p:
            return
        for rot in (8, 4, 2, 1):
            for u in p:
                A(f'    v_add_f32_dpp v{vS+u}, v{vS+u}, v{vS+u} row_ror:{rot} row_mask:0xf bank_mask:0xf')
            if len(p) < 3:
                A('    s_nop 1')
        state['pend'] = []
    def gate(seq, i):
        rem = len(seq) - i
        if i >= US - D:
            if rem in prio:
                A(f'    s_setprio {len(prio) - 1 - prio.index(rem)}')
            if rem in bars:
                A('    s_barrier')
    def kstep(seq, i):
        NL = len(seq)
        gate(seq, i)
        A(f'    s_waitcnt vmcnt({min(D-1, NL-1-i)})')
        r = vR + 4 * (i % D)
        A(f'    v_dot2_f32_bf16 v{vS+i}, v{r}, v{vQ}, 0')
        for j in range(1, 4):
            A(f'    v_dot2_f32_bf16 v{vS+i}, v{r+j}, v{vQ+j}, v{vS+i}')
        if i + D < NL:
            issue(seq, i + D)
        if len(state['pend']) >= 4:
            dpp_flush()
        state['pend'].append(i)
    m = vX
    lsum = m + 2
    def tail(seq, i0, U):
        NL = len(seq)
        for i in range(i0, U):
            kstep(seq, i)
        A('    s_nop 3')
        dpp_flush()
        if diag == 2:
            A('    s_memrealtime s[88:89]')
        A(f'    v_max3_f32 v{m}, v{vS}, v{vS+1}, v{vS+2}')
        k = 3
        while k + 1 < U:
            A(f'    v_max3_f32 v{m}, v{m}, v{vS+k}, v{vS+k+1}')
            k += 2
        if k < U:
            A(f'    v_max_f32 v{m}, v{m}, v{vS+k}')
        A(f'    v_mov_b32 v{m+1}, v{m}')
        A('    s_nop 1')
        A(f'    v_permlane32_swap_b32 v{m}, v{m+1}')
        A('    s_nop 1')
        A(f'    v_max_f32 v{m}, v{m}, v{m+1}')
        A(f'    v_mov_b32 v{m+1}, v{m}')
        A('    s_nop 1')
        A(f'    v_permlane16_swap_b32 v{m}, v{m+1}')
        A('    s_nop 1')
        A(f'    v_max_f32 v{m}, v{m}, v{m+1}')
        A(f'    v_mul_f32 v{m+1}, s60, v{m}')
        for u in range(U):
            A(f'    v_fma_f32 v{vS+u}, v{vS+u}, s60, -v{m+1}')
        for u in range(U):
            A(f'    v_exp_f32 v{vS+u}, v{vS+u}')
        A('    s_nop 0')
        A(f'    v_add_f32 v{lsum}, v{vS}, v{vS+1}')
        A(f'    v_add_f32 v{lsum+1}, v{vS+2}, v{vS+3}')
        for u in range(4, U, 2):
            A(f'    v_add_f32 v{lsum}, v{lsum}, v{vS+u}')
            A(f'    v_add_f32 v{lsum+1}, v{lsum+1}, v{vS+u+1}')
        A(f'    v_add_f32 v{lsum}, v{lsum}, v{lsum+1}')
        for i in range(U, NL):
            u = i - U
            gate(seq, i)
            A(f'    s_waitcnt vmcnt({min(D-1, NL-1-i)})')
            r = vR + 4 * (i % D)
            for j in range(4):
                A(f'    v_lshlrev_b32 v{vT+2*j}, 16, v{r+j}')
                A(f'    v_and_b32 v{vT+2*j+1}, s61, v{r+j}')
            if i + D < NL:
                issue(seq, i + D)
            for j in range(8):
                A(f'    v_fmac_f32 v{vACC+j}, v{vS+u}, v{vT+j}')
    i0 = US - Y - D
    for i in range(i0):
        kstep(seqS, i)
    A('    s_waitcnt lgkmcnt(0)')
    A(f'    v_readfirstlane_b32 s87, v{vX+6}')
    A('    s_nop 3')
    if UM:
        A('    s_cmp_lg_u32 s87, 0')
        A('    s_cbranch_scc1 L_big')
    saved = list(state['pend'])
    tail(seqS, i0, USM)
    if UM:
        A('    s_branch L_join')
        A('L_big:')
        state['pend'] = saved
        tail(seqB, i0, UB)
    A('L_join:')
    A(f'    v_mov_b32 v{lsum+1}, v{lsum}')
    A('    s_nop 1')
    for j in range(4):
        A(f'    v_permlane32_swap_b32 v{vACC+j}, v{vACC+4+j}')
    A(f'    v_permlane32_swap_b32 v{lsum}, v{lsum+1}')
    A('    s_nop 1')
    for j in range(4):
        A(f'    v_add_f32 v{vACC+j}, v{vACC+j}, v{vACC+4+j}')
    A(f'    v_add_f32 v{lsum}, v{lsum}, v{lsum+1}')
    A(f'    v_mov_b32 v{lsum+1}, v{lsum}')
    A('    s_nop 1')
    A(f'    v_permlane16_swap_b32 v{vACC}, v{vACC+2}')
    A(f'    v_permlane16_swap_b32 v{vACC+1}, v{vACC+3}')
    A(f'    v_permlane16_swap_b32 v{lsum}, v{lsum+1}')
    A('    s_nop 1')
    A(f'    v_add_f32 v{vACC}, v{vACC}, v{vACC+2}')
    A(f'    v_add_f32 v{vACC+1}, v{vACC+1}, v{vACC+3}')
    A(f'    v_add_f32 v{m+1}, v{lsum}, v{lsum+1}   ; wave l  (v{m}=m, v{m+1}=l)')
    t = vT
    A(f'    v_and_b32 v{t}, 15, v3')
    A(f'    v_lshlrev_b32 v{t}, 5, v{t}          ; c*32 bytes')
    A(f'    v_lshrrev_b32 v{t+1}, 4, v3')
    A(f'    v_lshl_add_u32 v{t}, v{t+1}, 3, v{t} ; + r*8')
    A('    s_lshl_b32 s62, s19, 9')
    A(f'    v_add_u32 v{t}, s62, v{t}')
    if diag == 2:
        A('    s_memrealtime s[84:85]')
        A('    s_lshl_b32 s93, s2, 3')
        A('    s_add_u32 s93, s93, s19')
        A('    s_lshl_b32 s93, s93, 2')
        A('    s_add_u32 s93, s93, 0x110000')
        A('    s_waitcnt lgkmcnt(0)')
        A(f'    v_mov_b32 v{vR+40}, s84')
        A(f'    v_mov_b32 v{vR+41}, 0')
        A('    s_mov_b64 exec, 1')
        A(f'    buffer_store_dword v{vR+40}, v{vR+41}, s[56:59], s93 offen')
        A('    s_mov_b64 exec, -1')
    A(f'    ds_write_b64 v{t}, v[{vACC}:{vACC+1}]')
    A('    s_lshl_b32 s62, s19, 3')
    A(f'    s_add_u32 s62, s62, {lds_ml}')
    A(f'    v_mov_b32 v{t+2}, s62')
    A(f'    ds_write_b64 v{t+2}, v[{m}:{m+1}]')
    A('    s_waitcnt lgkmcnt(0)')
    A('    s_barrier')
    A('    s_cmp_lg_u32 s19, 0')
    A('    s_cbranch_scc1 L_done')
    if diag == 2:
        A('    s_memrealtime s[92:93]')
        A('    s_getreg_b32 s94, hwreg(HW_REG_XCC_ID)')
        A('    s_waitcnt lgkmcnt(0)')
        A('    s_lshl_b32 s93, s2, 4')
        A('    s_add_u32 s93, s93, 0x100000')
        A(f'    v_mov_b32 v{vR+40}, s90')
        A(f'    v_mov_b32 v{vR+41}, s92')
        A(f'    v_mov_b32 v{vR+42}, s94')
        A(f'    v_mov_b32 v{vR+43}, s88')
        A(f'    v_mov_b32 v{vT}, 0')
        A('    s_mov_b64 exec, 1')
        A(f'    buffer_store_dwordx4 v[{vR+40}:{vR+43}], v{vT}, s[56:59], s93 offen')
        A('    s_mov_b64 exec, -1')
    A(f'    v_and_b32 v{t}, {NW-1}, v3')
    A(f'    v_lshlrev_b32 v{t}, 3, v{t}')
    A(f'    ds_read_b64 v[{m}:{m+1}], v{t} offset:{lds_ml}')
    A(f'    v_lshlrev_b32 v{t+1}, 3, v3           ; lane*8')
    for w in range(NW):
        A(f'    ds_read_b64 v[{vR+2*w}:{vR+2*w+1}], v{t+1} offset:{w*512}')
    A(f'    s_waitcnt lgkmcnt({min(NW,15)})')
    M = m + 2
    A(f'    v_mov_b32 v{M}, v{m}')
    A('    s_nop 1')
    rots = [r for r in (8, 4, 2, 1) if r < NW]
    for rot in rots:
        A(f'    v_max_f32_dpp v{M}, v{M}, v{M} row_ror:{rot} row_mask:0xf bank_mask:0xf')
        A('    s_nop 1')
    F = m + 3
    A(f'    v_sub_f32 v{F}, v{m}, v{M}')
    A(f'    v_mul_f32 v{F}, s60, v{F}')
    A(f'    v_exp_f32 v{F}, v{F}')
    A('    s_nop 0')
    Lr = m + 4
    A(f'    v_mul_f32 v{Lr}, v{m+1}, v{F}')
    A('    s_nop 1')
    for rot in rots:
        A(f'    v_add_f32_dpp v{Lr}, v{Lr}, v{Lr} row_ror:{rot} row_mask:0xf bank_mask:0xf')
        A('    s_nop 1')
    for w in range(NW):
        A(f'    v_readlane_b32 s{64+w}, v{F}, {w}')
    A('    s_waitcnt lgkmcnt(0)')
    o = vACC
    assert vACC % 4 == 0
    A(f'    v_mul_f32 v{o}, s64, v{vR}')
    A(f'    v_mul_f32 v{o+1}, s64, v{vR+1}')
    for w in range(1, NW):
        A(f'    v_fmac_f32 v{o}, s{64+w}, v{vR+2*w}')
        A(f'    v_fmac_f32 v{o+1}, s{64+w}, v{vR+2*w+1}')
    A(f'    v_mov_b32 v{o+2}, v{M}')
    A(f'    v_mov_b32 v{o+3}, v{Lr}')
    A(f'    s_mul_i32 s62, s17, {NSPLIT}')
    A('    s_add_u32 s63, s62, s18')
    A('    s_lshl_b32 s63, s63, 10')
    A('    s_lshl_b32 s62, s62, 10')
    A(f'    v_lshlrev_b32 v{t}, 4, v3             ; lane*16')
    A(f'    buffer_store_dwordx4 v[{o}:{o+3}], v{t}, s[56:59], s63 offen sc0 sc1')
    A('    s_waitcnt vmcnt(0)')
    A('    s_lshl_b32 s82, 1, s81')
    A(f'    v_mov_b32 v{t+2}, s82')
    A(f'    v_mov_b32 v{t+3}, s80')
    A('    s_mov_b64 exec, 1')
    A(f'    buffer_atomic_add v{t+2}, v{t+3}, s[52:55], 0 offen sc0 sc1')
    A('    s_mov_b64 exec, -1')
    A('    s_waitcnt vmcnt(0)')
    A(f'    v_readfirstlane_b32 s83, v{t+2}')
    A('    s_nop 3')
    A('    s_lshr_b32 s83, s83, s81')
    A('    s_and_b32 s83, s83, 0xff')
    A(f'    s_cmp_lg_u32 s83, {NSPLIT-1}')
    A('    s_cbranch_scc1 L_done')
    for sidx in range(NSPLIT):
        A(f'    buffer_load_dwordx4 v[{vR+4*sidx}:{vR+4*sidx+3}], v{t}, s[56:59], s62 offen offset:{sidx*1024} sc0 sc1')
    A('    s_waitcnt vmcnt(0)')
    A(f'    v_max_f32 v{M}, v{vR+2}, v{vR+6}')
    for sidx in range(NSPLIT):
        A(f'    v_sub_f32 v{vR+4*sidx+2}, v{vR+4*sidx+2}, v{M}')
        A(f'    v_mul_f32 v{vR+4*sidx+2}, s60, v{vR+4*sidx+2}')
        A(f'    v_exp_f32 v{vR+4*sidx+2}, v{vR+4*sidx+2}')
    A('    s_nop 0')
    A(f'    v_mul_f32 v{o}, v{vR}, v{vR+2}')
    A(f'    v_mul_f32 v{o+1}, v{vR+1}, v{vR+2}')
    A(f'    v_mul_f32 v{o+2}, v{vR+3}, v{vR+2}')
    for sidx in range(1, NSPLIT):
        b = vR + 4 * sidx
        A(f'    v_fmac_f32 v{o}, v{b}, v{b+2}')
        A(f'    v_fmac_f32 v{o+1}, v{b+1}, v{b+2}')
        A(f'    v_fmac_f32 v{o+2}, v{b+3}, v{b+2}')
    A(f'    v_rcp_f32 v{o+2}, v{o+2}')
    A('    s_nop 0')
    A(f'    v_mul_f32 v{o}, v{o}, v{o+2}')
    A(f'    v_mul_f32 v{o+1}, v{o+1}, v{o+2}')
    A(f'    v_cvt_pk_bf16_f32 v{o}, v{o}, v{o+1}')
    A(f'    v_lshlrev_b32 v{t+1}, 2, v3')
    A(f'    buffer_store_dword v{o}, v{t+1}, s[48:51], s22 offen')
    A('L_done:')
    A('    s_endpgm')
    A('.section .rodata,"a"')
    A('.p2align 6')
    A('.amdhsa_kernel standalone__softmax_full_bidir__decode_kernel')
    nva = (nv + 7) // 8 * 8
    A(f'  .amdhsa_next_free_vgpr {nva}')
    A('  .amdhsa_next_free_sgpr 96')
    A(f'  .amdhsa_accum_offset {nva}')
    A('  .amdhsa_group_segment_fixed_size 0')
    A('  .amdhsa_kernarg_size 48')
    A('  .amdhsa_user_sgpr_count 2')
    A('  .amdhsa_user_sgpr_kernarg_segment_ptr 1')
    A('  .amdhsa_system_sgpr_workgroup_id_x 1')
    A('.end_amdhsa_kernel')
    return '\n'.join(L) + '\n'

if __name__ == '__main__':
    import argparse
    ap = argparse.ArgumentParser()
    ap.add_argument('-o', default='r.s')
    ap.add_argument('--nw', type=int, default=8)
    ap.add_argument('--d', type=int, default=16)
    ap.add_argument('--um', type=int, default=16)
    ap.add_argument('--diag', type=int, default=0)
    ap.add_argument('--pol', type=int, default=0)
    ap.add_argument('--rot', type=str, default='')
    ap.add_argument('--gu', type=int, default=4)
    ap.add_argument('--prio', type=str, default='')
    ap.add_argument('--bars', type=str, default='')
    ap.add_argument('--wprio', type=int, default=0)
    ap.add_argument('--xm', type=int, default=None)
    ap.add_argument('--y', type=int, default=0)
    ap.add_argument('--lay', type=int, default=0)
    ap.add_argument('--perm', type=int, default=0)
    ap.add_argument('--il', type=int, default=0)
    a = ap.parse_args()
    tl = lambda x: tuple(int(y) for y in x.split(',')) if x else ()
    open(a.o, 'w').write(gen(a.nw, a.d, a.um, True, a.diag, a.pol, tuple(int(x) for x in a.rot.split(',')) if a.rot else None, a.gu, tl(a.prio), tl(a.bars), a.wprio, a.xm, a.y, a.lay, a.perm, a.il))
```
